```python
import torch

def _softmax(x, axis=-1):
    return torch.softmax(x, dim=axis)
def _gelu(x):
    return torch.nn.functional.gelu(x, approximate="tanh")
def _silu(x):
    return torch.nn.functional.silu(x)
def _sigmoid(x):
    return torch.sigmoid(x)
def _layernorm(x, axis=-1, eps=1e-5):
    m = x.mean(dim=axis, keepdim=True)
    v = x.var(dim=axis, keepdim=True, unbiased=False)
    return (x - m) / torch.sqrt(v + eps)
def _scatter_add(tgt, idx, src, axis=0):
    return tgt.clone().index_add_(axis, idx, src)
def _segment_sum(src, seg, n):
    out = torch.zeros((n,) + src.shape[1:], dtype=src.dtype)
    return out.index_add_(0, seg, src)
def _pad(x, pw):
    flat = tuple(v for pair in reversed(pw) for v in pair)
    return torch.nn.functional.pad(x, flat)

kernel_name = 'parallel_sum__softmax_full_mha__dense_activation_squared_relu__prompt'

def setup_inputs():

    _w = (lambda a: (lambda t: t.to(torch.bfloat16) if t.is_floating_point() else t)(torch.as_tensor(a)))
    def _A_setup():
        B, S, D = 1, 2048, 640
        return {
            "x": _w((lambda *s: torch.randn(*s, dtype=torch.bfloat16) * 0.05)(B, S, D)),
            "wqkv": _w((lambda *s: torch.randn(*s, dtype=torch.bfloat16) * 0.2)(D, 3 * D)),
            "wo": _w((lambda *s: torch.randn(*s, dtype=torch.bfloat16) * 0.1)(D, D)),
        }
    _A_in = _A_setup()

    def _B_setup():
        B, S, D, F = 1, 2048, 640, 1536
        return {
            "x": _w((lambda *s: torch.randn(*s, dtype=torch.bfloat16) * 0.05)(B, S, D)),
            "w1": _w((lambda *s: torch.randn(*s, dtype=torch.bfloat16) * 0.1)(D, F)),
            "b1": _w((lambda *s: torch.randn(*s, dtype=torch.bfloat16) * 0.1)(F)),
            "w2": _w((lambda *s: torch.randn(*s, dtype=torch.bfloat16) * 0.1)(F, D)),
            "b2": _w((lambda *s: torch.randn(*s, dtype=torch.bfloat16) * 0.1)(D)),
        }
    _B_in = _B_setup()

    return {
        "A_x": _A_in["x"],
        "A_wqkv": _A_in["wqkv"],
        "A_wo": _A_in["wo"],
        "B_x": _B_in["x"],
        "B_w1": _B_in["w1"],
        "B_b1": _B_in["b1"],
        "B_w2": _B_in["w2"],
        "B_b2": _B_in["b2"],
    }

def reference(A_x, A_wqkv, A_wo, B_x, B_w1, B_b1, B_w2, B_b2):
    def _A_ref(x, wqkv, wo):
        B, S, D = x.shape
        H = 32; Dh = D // H
        qkv = (lambda x, *d: x.permute(*d))((x @ wqkv).reshape(B, S, 3, H, Dh), 2, 0, 3, 1, 4)
        q, k, v = qkv[0], qkv[1], qkv[2]
        scale = Dh ** -0.5
        scores = torch.einsum("bhqd,bhkd->bhqk", q, k) * scale
        p = _softmax(scores, axis=-1)
        o = torch.einsum("bhqk,bhkd->bhqd", p, v)
        return (lambda x, *d: x.permute(*d))(o, 0, 2, 1, 3).reshape(B, S, D) @ wo

    def _B_ref(x, w1, b1, w2, b2):
        h = torch.einsum("bsd,df->bsf", x, w1) + b1
        zero = torch.zeros_like(h)
        r = torch.where(h > zero, h, zero)
        h = r * r
        out = torch.einsum("bsf,fd->bsd", h, w2) + b2
        return out

    x = A_x
    xn = _layernorm(x, axis=-1)
    return x + _A_ref(xn, A_wqkv, A_wo) + _B_ref(xn, B_w1, B_b1, B_w2, B_b2)
```

```python
class Asm:
    def __init__(self):
        self.lines = []
        self.uid = 0
    def __call__(self, s=""):
        for l in s.split("\n"):
            l = l.strip()
            if not l: continue
            if l.endswith(":") or l.startswith("."):
                self.lines.append(l)
            else:
                self.lines.append("    " + l)
    def c(self, s):
        self.lines.append("    ; " + s)
    def label(self, name):
        self.lines.append(name + ":")
    def newlabel(self, base="L"):
        self.uid += 1
        return f"{base}_{self.uid}"
    def text(self):
        return "\n".join(self.lines) + "\n"

def vr(a, n=1):
    return f"v{a}" if n == 1 else f"v[{a}:{a+n-1}]"
def ar(a, n=1):
    return f"a{a}" if n == 1 else f"a[{a}:{a+n-1}]"
def sr(a, n=1):
    return f"s{a}" if n == 1 else f"s[{a}:{a+n-1}]"

def kernel_header(A, name):
    A(f".text")
    A(f".globl {name}")
    A(f".p2align 8")
    A(f".type {name},@function")
    A.label(name)

def kernel_footer(A, name, nvgpr, nsgpr, accum=None):
    if accum is None:
        accum = ((nvgpr + 3)//4)*4
    A(f'.section .rodata,"a"')
    A(f".p2align 6")
    A(f".amdhsa_kernel {name}")
    A.lines.append(f"  .amdhsa_next_free_vgpr {nvgpr}")
    A.lines.append(f"  .amdhsa_next_free_sgpr {nsgpr}")
    A.lines.append(f"  .amdhsa_accum_offset {accum}")
    A.lines.append(f"  .amdhsa_group_segment_fixed_size 0")
    A.lines.append(f"  .amdhsa_kernarg_size 88")
    A.lines.append(f"  .amdhsa_user_sgpr_count 2")
    A.lines.append(f"  .amdhsa_user_sgpr_kernarg_segment_ptr 1")
    A.lines.append(f"  .amdhsa_system_sgpr_workgroup_id_x 1")
    A(f".end_amdhsa_kernel")
```

```python
from asmlib import *
from gen_k2 import WS_Q, WS_KV, WS_H, WS_O, WS_W2F, WS_WOF, WS_PART, WS_SIZE, f2u

C_Q = 20**-0.5 * 1.4426950408889634
RING = 45056
L_STA = 3*RING
L_STB = L_STA + 512
L_CS  = L_STB + 512
L_B1  = L_CS + 896
L_SIDE= 139264
K1_LDS = L_SIDE + 16384

def gen_k1(A, name="k1_kernel", cfg=None):
    cfg = cfg or {}
    prof = cfg.get("prof1", False)
    SRD_X, SRD_WQ, SRD_W1, SRD_WS, SRD_T = 8, 12, 16, 20, 24
    sRb, sCg, sW, sR = 28, 29, 30, 31
    sC = 32
    sRingD = 33
    sDelta = 34
    sRingI = 35
    sSo = 36
    sCol = 44
    sOnes = 51
    sT = 52
    sTT = 64
    vLane, vM, vHh = 1, 2, 3
    vL16 = 4
    vWq, vW1o, vXe, vXo = 5, 6, 7, 8
    vXa = 10
    vWa = 14
    vSx, vSxx = 15, 16
    vCs = 176
    BUF = [20, 40]
    ACC = 64
    T = 128
    def stamp(i):
        if prof: A(f"s_memtime s[{70+2*i}:{71+2*i}]")

    kernel_header(A, name)
    stamp(0)
    A(f"""
    s_cmp_ge_u32 s2, 256
    s_cbranch_scc1 K1_END
    s_load_dwordx4 s[4:7], s[0:1], 0        ; x, wqkv
    s_load_dwordx2 s[52:53], s[0:1], 16     ; wo
    s_load_dwordx4 s[56:59], s[0:1], 32     ; w1, b1
    s_load_dwordx2 s[54:55], s[0:1], 48     ; w2
    s_load_dwordx2 s[60:61], s[0:1], 80     ; ws
    v_and_b32 v{vLane}, 63, v0
    v_lshrrev_b32 v9, 6, v0
    v_and_b32 v{vM}, 31, v{vLane}
    v_readfirstlane_b32 s{sW}, v9
    v_lshrrev_b32 v{vHh}, 5, v{vLane}
    v_lshlrev_b32 v{vL16}, 4, v{vLane}
    s_and_b32 s62, s2, 7
    s_lshr_b32 s63, s2, 3
    s_and_b32 s{sRb}, s62, 1
    s_lshl_b32 s{sRb}, s{sRb}, 3
    s_and_b32 s{sCg}, s63, 7
    s_add_u32 s{sRb}, s{sRb}, s{sCg}       ; rb = 8*(x&1) + (j&7)
    s_lshr_b32 s{sCg}, s62, 1
    s_lshl_b32 s{sCg}, s{sCg}, 2
    s_lshr_b32 s63, s63, 3
    s_add_u32 s{sCg}, s{sCg}, s63          ; cg = 4*(x>>1) + (j>>3)
    s_and_b32 s{sR}, s{sW}, 3
    s_lshl_b32 s{sTT}, s{sRb}, 2
    s_add_u32 s{sTT}, s{sTT}, s{sR}
    s_mov_b32 s{sOnes}, 0x3f803f80
    v_lshrrev_b32 v9, 2, v{vLane}          ; row = l>>2
    v_and_b32 v18, 3, v{vLane}
    v_lshlrev_b32 v18, 4, v18              ; (l&3)*16
    v_mul_u32_u24 v{vWq}, 3840, v9
    v_add_u32 v{vWq}, v{vWq}, v18
    v_mul_u32_u24 v{vW1o}, 3072, v9
    v_add_u32 v{vW1o}, v{vW1o}, v18
    v_lshrrev_b32 v9, 3, v{vLane}
    v_mul_u32_u24 v{vXe}, 1280, v9
    v_lshrrev_b32 v9, 4, v{vLane}
    v_and_b32 v18, 7, v{vLane}
    v_xor_b32 v19, v18, v9                 ; even: f = l>>4 (0..3)
    v_lshlrev_b32 v19, 4, v19
    v_xor_b32 v9, 4, v9                    ; odd: f = 4 + (l>>4)
    v_xor_b32 v9, v18, v9
    v_lshlrev_b32 v9, 4, v9
    v_add_u32 v{vXo}, v{vXe}, v9
    v_add_u32 v{vXe}, v{vXe}, v19
    v_lshrrev_b32 v9, 1, v{vM}
    v_and_b32 v9, 7, v9
    s_lshl_b32 s62, s{sR}, 12              ; 32r*128
    v_lshlrev_b32 v18, 7, v{vM}
    v_add_u32 v18, s62, v18
    """)
    for q in range(4):
        A(f"""
        v_add_u32 v19, {2*q}, v{vHh}
        v_xor_b32 v19, v19, v9
        v_lshl_add_u32 v{vXa+q}, v19, 4, v18
        """)
    A(f"""
    v_lshrrev_b32 v9, 5, v{vLane}          ; G>>1
    v_lshlrev_b32 v9, 9, v9                ; *8*64
    v_bfe_u32 v18, v{vLane}, 2, 2          ; r4
    v_lshl_add_u32 v9, v18, 6, v9
    v_bfe_u32 v18, v{vLane}, 4, 1          ; G&1
    v_lshl_add_u32 v9, v18, 5, v9
    v_and_b32 v18, 3, v{vLane}
    v_lshl_add_u32 v9, v18, 3, v9
    v_add_u32 v{vWa}, 16384, v9
    v_mov_b32 v{T+40}, v9
    v_mov_b32 v{vSx}, 0
    v_mov_b32 v{vSxx}, 0
    v_mov_b32 v{vCs}, 0
    v_mov_b32 v{vCs+1}, 0
    v_mov_b32 v{vCs+2}, 0
    v_mov_b32 v{vCs+3}, 0
    v_lshlrev_b32 v9, 2, v0
    v_add_u32 v9, {L_CS}, v9
    v_mov_b32 v18, 0
    v_cmp_gt_u32 vcc, 224, v0
    s_and_saveexec_b64 s[62:63], vcc
    ds_write_b32 v9, v18
    s_mov_b64 exec, s[62:63]
    """)
    for r in range(64): A(f"v_mov_b32 v{ACC+r}, 0")
    for r in range(20): A(f"v_mov_b32 v{BUF[1]+r}, 0")
    A(f"""
    s_waitcnt lgkmcnt(0)
    s_mov_b32 s{SRD_X}, s4
    s_and_b32 s{SRD_X+1}, s5, 0xffff
    s_mov_b32 s{SRD_X+2}, 2621440
    s_mov_b32 s{SRD_X+3}, 0x00020000
    s_mov_b32 s{SRD_WQ}, s6
    s_and_b32 s{SRD_WQ+1}, s7, 0xffff
    s_mov_b32 s{SRD_WQ+2}, 2457600
    s_mov_b32 s{SRD_WQ+3}, 0x00020000
    s_mov_b32 s{SRD_W1}, s56
    s_and_b32 s{SRD_W1+1}, s57, 0xffff
    s_mov_b32 s{SRD_W1+2}, 1966080
    s_mov_b32 s{SRD_W1+3}, 0x00020000
    s_mov_b32 s{SRD_WS}, s60
    s_and_b32 s{SRD_WS+1}, s61, 0xffff
    s_mov_b32 s{SRD_WS+2}, {WS_SIZE}
    s_mov_b32 s{SRD_WS+3}, 0x00020000
    """)
    vS1, vS2 = T+41, T+42
    A(f"""
    v_lshrrev_b32 v9, 2, v{vLane}
    v_bfe_u32 v18, v9, 2, 1                ; (rho&7)>>2
    v_lshrrev_b32 v19, 3, v9               ; rho>>3
    v_and_b32 v9, 3, v9                    ; rho&3
    v_lshl_add_u32 v{vS1}, v18, 3, v9
    v_lshl_add_u32 v{vS1}, v19, 2, v{vS1}
    v_mul_u32_u24 v{vS1}, 1280, v{vS1}
    v_lshl_add_u32 v{vS2}, v19, 1, v18
    v_mul_u32_u24 v{vS2}, 20, v{vS2}
    v_add_u32 v{vS2}, v{vS2}, v9
    v_mul_u32_u24 v{vS2}, 1280, v{vS2}
    v_and_b32 v9, 3, v{vLane}
    v_lshlrev_b32 v9, 4, v9
    v_add_u32 v{vS1}, v{vS1}, v9
    v_add_u32 v{vS2}, v{vS2}, v9
    s_lshl_b32 s65, s2, 3
    s_add_u32 s65, s65, s{sW}              ; gw
    """)
    for i in range(2):
        skip = f"K1_SIDE_SKIP{i}"
        A(f"""
        s_add_u32 s62, s65, {2048*i}
        s_cmp_ge_u32 s62, 2720
        s_cbranch_scc1 {skip}
        s_lshl_b32 s63, s{sW}, 11
        s_add_u32 m0, s63, {L_SIDE + 1024*i}
        s_cmp_ge_u32 s62, 1920
        s_cbranch_scc1 K1_SIDE_WO{i}
        ; W2: ct = b/96, ks = b%96
        s_mul_i32 s63, s62, 43691
        s_lshr_b32 s63, s63, 22            ; ct
        s_mul_i32 s4, s63, 96
        s_sub_u32 s4, s62, s4              ; ks
        s_mul_i32 s4, s4, {16*1280}
        s_lshl_b32 s63, s63, 6
        s_add_u32 s4, s4, s63
        s_mov_b32 s{SRD_T}, s54
        s_and_b32 s{SRD_T+1}, s55, 0xffff
        s_mov_b32 s{SRD_T+2}, 1966080
        s_mov_b32 s{SRD_T+3}, 0x00020000
        buffer_load_dwordx4 v{vS1}, s[{SRD_T}:{SRD_T+3}], s4 offen lds
        s_branch {skip}
        """)
        A.label(f"K1_SIDE_WO{i}")
        A(f"""
        s_sub_u32 s62, s62, 1920
        s_mul_i32 s63, s62, 52429
        s_lshr_b32 s63, s63, 21            ; ct = b'/40
        s_mul_i32 s4, s63, 40
        s_sub_u32 s4, s62, s4              ; ks
        s_mul_i32 s5, s4, 52429
        s_lshr_b32 s5, s5, 18              ; G = ks/5
        s_mul_i32 s6, s5, 5
        s_sub_u32 s6, s4, s6               ; r5
        s_lshl_b32 s63, s63, 6             ; ct*64
        s_mov_b32 s{SRD_T}, s52
        s_and_b32 s{SRD_T+1}, s53, 0xffff
        s_mov_b32 s{SRD_T+2}, 819200
        s_mov_b32 s{SRD_T+3}, 0x00020000
        s_cmp_eq_u32 s6, 4
        s_cbranch_scc1 K1_SIDE_WOT{i}
        s_lshl_b32 s5, s5, 2
        s_add_u32 s5, s5, s6               ; head
        s_mul_i32 s5, s5, {20*1280}
        s_add_u32 s5, s5, s63
        buffer_load_dwordx4 v{vS1}, s[{SRD_T}:{SRD_T+3}], s5 offen lds
        s_branch {skip}
        """)
        A.label(f"K1_SIDE_WOT{i}")
        A(f"""
        s_mul_i32 s5, s5, {80*1280}
        s_add_u32 s5, s5, {16*1280}
        s_add_u32 s5, s5, s63
        buffer_load_dwordx4 v{vS2}, s[{SRD_T}:{SRD_T+3}], s5 offen lds
        """)
        A.label(skip)
    A(f"""
    s_mul_i32 s62, s{sCg}, 192
    s_mov_b32 s{sCol+4}, s62
    s_add_u32 s{sCol+5}, s62, 64
    s_add_u32 s{sCol+6}, s62, 128
    s_cmp_ge_u32 s{sCg}, 12
    s_cbranch_scc1 K1_COLB
    s_lshl_b32 s63, s{sCg}, 6
    s_add_u32 s{sCol+0}, s63, 2560
    s_mov_b32 s{sCol+1}, s62
    s_add_u32 s{sCol+2}, s62, 64
    s_add_u32 s{sCol+3}, s62, 128
    s_branch K1_COLD
    """)
    A.label("K1_COLB")
    A(f"""
    s_sub_u32 s63, s{sCg}, 12
    s_lshl_b32 s62, s63, 7
    s_add_u32 s{sCol+0}, s62, {2560 + 12*64}
    s_add_u32 s{sCol+1}, s{sCol+0}, 64
    s_lshl_b32 s62, s63, 6
    s_add_u32 s{sCol+2}, s62, {36*64}
    s_mov_b32 s{sCol+3}, 0
    """)
    A.label("K1_COLD")
    A(f"""
    s_mov_b32 s{sC}, 0
    s_mov_b32 s{sRingD}, 0
    s_mov_b32 s{sRingI}, 0
    s_cmp_ge_u32 s{sW}, 4
    s_cbranch_scc1 K1_CH1
    s_cmp_ge_u32 s{sCg}, 12
    s_cbranch_scc1 K1_CH0B
    """)

    def gen_path(tag, ch, types):
        nsl = len(types)
        ndma = nsl if ch == 0 else 4 + nsl
        A.label(f"K1_{tag}")
        if ch == 0:
            A(f"s_mul_i32 s{sT}, s{sR}, {16*3840}")
            for i, (s, ty) in enumerate(types):
                A(f"s_add_u32 s{sSo+i}, s{sT}, s{sCol+s}")
        else:
            A(f"s_mul_i32 s{sT}, s{sR}, {16*3072}")
            for i, (s, ty) in enumerate(types):
                A(f"s_add_u32 s{sSo+4+i}, s{sT}, s{sCol+s}")
            A(f"s_lshl_b32 s{sT}, s{sRb}, 7")
            A(f"s_lshl_b32 s{sT+1}, s{sR}, 5")
            A(f"s_add_u32 s{sT}, s{sT}, s{sT+1}")
            A(f"s_mul_i32 s{sT}, s{sT}, 1280")
            for i in range(4):
                A(f"s_add_u32 s{sSo+i}, s{sT}, {i*8*1280}")
        def issue_dma():
            A(f"s_lshl_b32 s{sT+2}, s{sR}, 10")
            A(f"s_add_u32 s{sT+2}, s{sT+2}, s{sRingD}")
            if ch == 1:
                A(f"s_lshl_b32 s{sT+3}, s{sR}, 12")
                A(f"s_add_u32 s{sT+3}, s{sT+3}, s{sRingD}")
                for i in range(4):
                    A(f"s_add_u32 m0, s{sT+3}, {i*1024}")
                    A(f"s_nop 0")
                    A(f"buffer_load_dwordx4 v{vXe if i % 2 == 0 else vXo}, s[{SRD_X}:{SRD_X+3}], s{sSo+i} offen lds")
                    A(f"s_add_u32 s{sSo+i}, s{sSo+i}, 128")
            for i, (s, ty) in enumerate(types):
                so = sSo + i + (4 if ch == 1 else 0)
                A(f"s_add_u32 m0, s{sT+2}, {16384 + s*4096}")
                A(f"s_nop 0")
                if ch == 0:
                    A(f"buffer_load_dwordx4 v{vWq}, s[{SRD_WQ}:{SRD_WQ+3}], s{so} offen lds")
                    A(f"s_add_u32 s{so}, s{so}, {64*3840}")
                else:
                    A(f"buffer_load_dwordx4 v{vW1o}, s[{SRD_W1}:{SRD_W1+3}], s{so} offen lds")
                    A(f"s_add_u32 s{so}, s{so}, {64*3072}")
            A(f"s_add_u32 s{sRingD}, s{sRingD}, {RING}")
            A(f"s_cmp_eq_u32 s{sRingD}, {3*RING}")
            A(f"s_cselect_b32 s{sRingD}, 0, s{sRingD}")
        issue_dma(); issue_dma()
        if ch == 1:
            A(f"""
            s_cmp_ge_u32 s{sR}, 3
            s_cbranch_scc1 K1_NOB1
            s_lshl_b32 s{sT}, s{sR}, 6
            s_add_u32 s{sT}, s{sT}, s{sCol+4}
            s_add_u32 s58, s58, s{sT}
            s_addc_u32 s59, s59, 0
            v_lshlrev_b32 v9, 1, v{vM}
            global_load_ushort v{T+43}, v9, s[58:59]
            s_branch K1_B1D
            """)
            A.label("K1_NOB1")
            A(f"v_lshlrev_b32 v9, 1, v{vM}")
            A(f"global_load_ushort v{T+43}, v9, s[58:59]")
            A.label("K1_B1D")
            ndma_first_extra = 1
        def reads(q, buf):
            B = BUF[buf]
            A(f"ds_read_b128 {vr(B,4)}, v{vXa+q}")
            for i, (s, ty) in enumerate(types):
                off = (s*4 + q)*1024
                A(f"ds_read_b64_tr_b16 {vr(B+4+4*i,2)}, v{vWa} offset:{off}")
                A(f"ds_read_b64_tr_b16 {vr(B+6+4*i,2)}, v{vWa} offset:{off+256}")
        def mfmas(buf):
            B = BUF[buf]
            cs_i = None
            for i, (s, ty) in enumerate(types):
                acc = vr(ACC+16*i, 16)
                if ty == "V":
                    A(f"v_mfma_f32_32x32x16_bf16 {acc}, {vr(B,4)}, {vr(B+4+4*i,4)}, {acc}")
                else:
                    A(f"v_mfma_f32_32x32x16_bf16 {acc}, {vr(B+4+4*i,4)}, {vr(B,4)}, {acc}")
                if ch == 1:
                    if i < 2:
                        for k in (2*i, 2*i+1):
                            A(f"v_dot2c_f32_bf16 v{vSx}, s{sOnes}, v{B+k}")
                            A(f"v_dot2c_f32_bf16 v{vSxx}, v{B+k}, v{B+k}")
        ool = []
        def colsum(buf, lab, pos):
            A(f"s_cmp_eq_u32 s{sR}, {pos}")
            A(f"s_cbranch_scc1 K1_CS_{tag}_{lab}")
            A.label(f"K1_CSR_{tag}_{lab}")
            ool.append((buf, lab))
        def emit_ool():
            for (buf, lab) in ool:
                B = BUF[buf]
                A.label(f"K1_CS_{tag}_{lab}")
                for k in range(4):
                    for i in range(nsl):
                        A(f"v_dot2c_f32_bf16 v{vCs+i}, s{sOnes}, v{B+4+4*i+k}")
                A(f"s_branch K1_CSR_{tag}_{lab}")
        A.label(f"K1_LOOP_{tag}")
        A(f"s_cmp_eq_u32 s{sC}, 9")
        A(f"s_cbranch_scc1 K1_W0_{tag}")
        A(f"s_waitcnt vmcnt({ndma})")
        A(f"s_branch K1_W1_{tag}")
        A.label(f"K1_W0_{tag}")
        A(f"s_waitcnt vmcnt(0)")
        A.label(f"K1_W1_{tag}")
        A("s_barrier")
        reads(0, 0)
        A(f"s_cmp_lg_u32 s{sC}, 0")
        A(f"s_cbranch_scc1 K1_NS_{tag}")
        for i in range(2):
            A(f"""
            s_add_u32 s62, s65, {2048*i}
            s_cmp_ge_u32 s62, 2720
            s_cbranch_scc1 K1_NS_{tag}
            s_lshl_b32 s63, s{sW}, 11
            s_add_u32 s63, s63, {L_SIDE + 1024*i}
            v_add_u32 v9, s63, v{T+40}
            ds_read_b64_tr_b16 {vr(T+44,2)}, v9
            ds_read_b64_tr_b16 {vr(T+46,2)}, v9 offset:256
            s_lshl_b32 s62, s62, 10
            s_add_u32 s62, s62, {WS_W2F}
            s_waitcnt lgkmcnt(0)
            buffer_store_dwordx4 {vr(T+44,4)}, v{vL16}, s[{SRD_WS}:{SRD_WS+3}], s62 offen
            """)
        A.label(f"K1_NS_{tag}")
        A(f"s_cmp_ge_u32 s{sC}, 8")
        A(f"s_cbranch_scc1 K1_ND_{tag}")
        issue_dma()
        A.label(f"K1_ND_{tag}")
        mfmas(1); colsum(1, "a", 0)
        A("s_waitcnt lgkmcnt(0)"); reads(1, 1); mfmas(0); colsum(0, "b", 1)
        A("s_waitcnt lgkmcnt(0)"); reads(2, 0); mfmas(1); colsum(1, "c", 2)
        A("s_waitcnt lgkmcnt(0)"); reads(3, 1); mfmas(0); colsum(0, "d", 3)
        A(f"""
        s_add_u32 s{sRingI}, s{sRingI}, 1
        s_cmp_eq_u32 s{sRingI}, 3
        s_mov_b32 s{sDelta}, {RING}
        s_cselect_b32 s{sDelta}, {(-2*RING) & 0xffffffff}, s{sDelta}
        s_cselect_b32 s{sRingI}, 0, s{sRingI}
        """)
        for q in range(4): A(f"v_add_u32 v{vXa+q}, s{sDelta}, v{vXa+q}")
        A(f"v_add_u32 v{vWa}, s{sDelta}, v{vWa}")
        A(f"""
        s_waitcnt lgkmcnt(0)
        s_add_u32 s{sC}, s{sC}, 1
        s_cmp_lt_u32 s{sC}, 10
        s_cbranch_scc1 K1_LOOP_{tag}
        """)
        mfmas(1); colsum(1, "e", 0)
        stamp(2)
        A(f"v_lshlrev_b32 v{T}, 2, v{vM}")
        A(f"v_add_u32 v{T}, {L_STA}, v{T}")
        A("s_nop 2")
        for i, (sl, ty) in enumerate(types):
            A(f"ds_add_f32 v{T}, v{vCs+i} offset:{L_CS - L_STA + sl*128}")
        if ch == 1:
            A(f"""
            s_cmp_ge_u32 s{sR}, 3
            s_cbranch_scc1 K1_NCS_{tag}
            s_lshl_b32 s62, s{sR}, 7
            s_add_u32 s62, s62, {L_B1}
            v_lshl_add_u32 v{T}, v{vM}, 2, s62
            v_lshlrev_b32 v{T+43}, 16, v{T+43}
            ds_write_b32 v{T}, v{T+43}
            """)
            A.label(f"K1_NCS_{tag}")
        if ch == 1:
            A(f"""
            v_mov_b32 v{T}, v{vSx}
            v_mov_b32 v{T+1}, v{vSxx}
            s_nop 1
            v_permlane32_swap_b32 v{T}, v{vSx}
            v_permlane32_swap_b32 v{T+1}, v{vSxx}
            s_nop 1
            v_add_f32 v{vSx}, v{vSx}, v{T}
            v_add_f32 v{vSxx}, v{vSxx}, v{T+1}
            v_mul_f32 v{vSx}, {hex(f2u(1.0/640))}, v{vSx}          ; mu
            v_mul_f32 v{vSxx}, {hex(f2u(1.0/640))}, v{vSxx}        ; E[x^2]
            v_fma_f32 v{vSxx}, -v{vSx}, v{vSx}, v{vSxx}            ; var
            v_max_f32 v{vSxx}, 0, v{vSxx}
            v_add_f32 v{vSxx}, {hex(f2u(1e-5))}, v{vSxx}
            v_rsq_f32 v{vSxx}, v{vSxx}                              ; rstd
            s_nop 0
            v_mul_f32 v{vSx}, v{vSx}, v{vSxx}
            v_sub_f32 v{vSx}, 0, v{vSx}                             ; -mu*rstd
            s_lshl_b32 s62, s{sR}, 7
            s_add_u32 s62, s62, {L_STA}
            v_lshl_add_u32 v{T}, v{vM}, 2, s62
            ds_write_b32 v{T}, v{vSxx}
            ds_write_b32 v{T}, v{vSx} offset:512
            """)
        A("s_waitcnt lgkmcnt(0)")
        A("s_barrier")
        if ch == 0:
            A(f"""
            s_lshl_b32 s62, s{sR}, 7
            s_add_u32 s62, s62, {L_STA}
            v_lshl_add_u32 v{T}, v{vM}, 2, s62
            ds_read_b32 v{vSxx}, v{T}
            ds_read_b32 v{vSx}, v{T} offset:512
            """)
        A(f"v_lshlrev_b32 v{T+1}, 4, v{vHh}")
        A(f"v_add_u32 v{T+1}, {L_STA}, v{T+1}")
        for i, (s, ty) in enumerate(types):
            acc = ACC + 16*i
            CSr = T + 4
            X2 = T + 20
            PK = T + 36
            if ty in ("QK", "H"):
                for g in range(4):
                    A(f"ds_read_b128 {vr(CSr+4*g,4)}, v{T+1} offset:{L_CS - L_STA + s*128 + g*32}")
                if ty == "H":
                    for g in range(4):
                        A(f"ds_read_b128 {vr(X2+4*g,4)}, v{T+1} offset:{L_B1 - L_STA + (s-4)*128 + g*32}")
                A("s_waitcnt lgkmcnt(0)")
                if ty == "QK":
                    A(f"""
                    s_cmp_lt_u32 s{sCol+s}, 1280
                    s_cselect_b32 s62, {hex(f2u(C_Q))}, 1.0
                    v_mul_f32 v{T+2}, s62, v{vSxx}
                    v_mul_f32 v{T+3}, s62, v{vSx}
                    """)
                    for r in range(16):
                        A(f"v_mul_f32 v{CSr+r}, v{T+3}, v{CSr+r}")
                        A(f"v_fma_f32 v{acc+r}, v{acc+r}, v{T+2}, v{CSr+r}")
                    for j in range(8):
                        A(f"v_cvt_pk_bf16_f32 v{PK+j}, v{acc+2*j}, v{acc+2*j+1}")
                    A(f"""
                    s_lshr_b32 s7, s{sCol+s}, 3
                    s_cmp_ge_u32 s7, 160
                    s_cselect_b32 s66, 1, 0                   ; isK
                    s_cselect_b32 s6, {WS_KV}, {WS_Q}
                    s_lshl_b32 s5, 81920, s66
                    s_lshl_b32 s67, 1280, s66
                    s_mul_i32 s67, s67, s{sTT}
                    s_add_u32 s67, s67, s6
                    s_lshl_b32 s66, s66, 5                    ; 32 if K
                    v_mul_u32_u24 v{T+2}, 40, v{vM}
                    """)
                    for g in range(4):
                        A(f"""
                        s_add_u32 s62, s7, {2*g}              ; Z0
                        s_mul_i32 s63, s62, 52429
                        s_lshr_b32 s63, s63, 18               ; hs0
                        s_mul_i32 s4, s63, 5
                        s_sub_u32 s4, s62, s4                 ; q0
                        s_sub_u32 s63, s63, s66               ; head
                        s_mul_i32 s63, s63, s5
                        s_add_u32 s63, s63, s67
                        s_lshl_b32 s6, s4, 3
                        s_add_u32 s63, s63, s6
                        s_sub_u32 s6, s5, 32
                        s_cmp_eq_u32 s4, 4
                        s_cselect_b32 s6, s6, 8
                        v_mad_u32_u24 v{T}, v{vHh}, s6, v{T+2}
                        buffer_store_dwordx2 {vr(PK+2*g,2)}, v{T}, s[{SRD_WS}:{SRD_WS+3}], s63 offen
                        """)
                else:
                    for r in range(16):
                        A(f"v_fma_f32 v{CSr+r}, v{vSx}, v{CSr+r}, v{X2+r}")
                        A(f"v_fma_f32 v{acc+r}, v{acc+r}, v{vSxx}, v{CSr+r}")
                        A(f"v_max_f32 v{acc+r}, 0, v{acc+r}")
                        A(f"v_mul_f32 v{acc+r}, v{acc+r}, v{acc+r}")
                    for j in range(8):
                        A(f"v_cvt_pk_bf16_f32 v{PK+j}, v{acc+2*j}, v{acc+2*j+1}")
                    A(f"""
                    s_mul_i32 s62, s{sTT}, 96
                    s_lshr_b32 s63, s{sCol+s}, 5             ; 2*ht
                    s_add_u32 s62, s62, s63
                    s_lshl_b32 s62, s62, 10
                    s_add_u32 s62, s62, {WS_H}
                    buffer_store_dwordx4 {vr(PK,4)}, v{vL16}, s[{SRD_WS}:{SRD_WS+3}], s62 offen
                    buffer_store_dwordx4 {vr(PK+4,4)}, v{vL16}, s[{SRD_WS}:{SRD_WS+3}], s62 offen offset:1024
                    """)
            else:
                A(f"s_lshl_b32 s62, s{sR}, 7")
                A(f"v_add_u32 v{T+2}, s62, v{T+1}")
                for g in range(4):
                    A(f"ds_read_b128 {vr(CSr+4*g,4)}, v{T+2} offset:{g*32}")
                for g in range(4):
                    A(f"ds_read_b128 {vr(X2+4*g,4)}, v{T+2} offset:{L_STB - L_STA + g*32}")
                A(f"v_lshlrev_b32 v{T+3}, 2, v{vM}")
                A(f"v_add_u32 v{T+3}, {L_STA}, v{T+3}")
                A(f"ds_read_b32 v{T+3}, v{T+3} offset:{L_CS - L_STA + s*128}")
                A("s_waitcnt lgkmcnt(0)")
                for r in range(16):
                    A(f"v_mul_f32 v{X2+r}, v{X2+r}, v{T+3}")
                    A(f"v_fma_f32 v{acc+r}, v{acc+r}, v{CSr+r}, v{X2+r}")
                for j in range(8):
                    A(f"v_cvt_pk_bf16_f32 v{PK+j}, v{acc+2*j}, v{acc+2*j+1}")
                A(f"""
                s_sub_u32 s62, s{sCol+s}, 2560
                s_lshr_b32 s62, s62, 1
                v_add_u32 v{T}, s62, v{vM}
                s_mov_b32 s63, 52429
                v_mul_lo_u32 v{T+2}, v{T}, s63
                v_lshrrev_b32 v{T+2}, 20, v{T+2}          ; head
                v_mul_u32_u24 v{T+3}, 20, v{T+2}
                v_sub_u32 v{T}, v{T}, v{T+3}               ; d
                v_lshlrev_b32 v{T}, 4, v{T}
                s_mov_b32 s63, 163840
                v_mul_lo_u32 v{T+2}, v{T+2}, s63
                v_add_u32 v{T}, v{T}, v{T+2}
                v_mul_u32_u24 v{T+2}, 320, v{vHh}
                v_add_u32 v{T}, v{T}, v{T+2}
                s_mul_i32 s62, s{sTT}, 2560
                s_add_u32 s62, s62, {WS_KV + 1280}
                buffer_store_dwordx4 {vr(PK,4)}, v{T}, s[{SRD_WS}:{SRD_WS+3}], s62 offen
                buffer_store_dwordx4 {vr(PK+4,4)}, v{T}, s[{SRD_WS}:{SRD_WS+3}], s62 offen offset:640
                """)
            A("s_nop 1")
        stamp(3)
        if prof and tag == "CH0A":
            A(f"""
            s_load_dwordx2 s[56:57], s[0:1], 72
            s_waitcnt lgkmcnt(0)
            s_cmp_lg_u32 s2, 0
            s_cbranch_scc1 K1_END
            s_mov_b64 exec, 1
            s_lshl_b32 s62, s{sW}, 5
            v_mov_b32 v1, s62
            s_sub_u32 s74, s74, s70
            s_sub_u32 s76, s76, s70
            v_mov_b32 v2, s74
            v_mov_b32 v3, s76
            global_store_dwordx2 v1, v[2:3], s[56:57]
            """)
        A("s_endpgm")
        emit_ool()

    gen_path("CH0A", 0, [(0, "V"), (1, "QK"), (2, "QK"), (3, "QK")])
    gen_path("CH0B", 0, [(0, "V"), (1, "V"), (2, "QK")])
    gen_path("CH1", 1, [(4, "H"), (5, "H"), (6, "H")])
    A.label("K1_END")
    A("s_endpgm")
    kernel_footer(A, name, 184, 96)
```

```python
from asmlib import *

WS_Q   = 0x0
WS_KV  = 0x280000
WS_H   = 0x780000
WS_O   = 0xD80000
WS_W2F = 0x1000000
WS_WOF = 0x11E0000
WS_PART= 0x1300000
WS_SIZE= 0x2000000

OFFSET = 64.0
NSAMP_PAIRS = 2

import struct
def f2u(f):
    return struct.unpack("<I", struct.pack("<f", f))[0]

def gen_k2(A, name="k2_kernel", cfg=None):
    cfg = cfg or {}
    nsamp = cfg.get("nsamp_pairs", NSAMP_PAIRS)
    offset = cfg.get("offset", OFFSET)
    vLane16 = 7
    vK1a, vK2a, vVa = 2, 3, 4
    Q1, Q2 = 8, 12
    KF1, KF2 = 16, 20
    VB = [24, 32]
    P0, P1 = 40, 44
    NEGM = 48
    S = [64, 80]
    O = 96
    T = 112
    sHead, sQb, sWave = 12, 13, 14
    sMask = 16
    sCnt, sOff, sFlag, sNs, sOffs = 18, 19, 20, 21, 22
    prof = cfg.get("prof", False)
    def stamp(i):
        if prof:
            A(f"s_memtime s[{40+2*i}:{41+2*i}]")
    kernel_header(A, name)
    stamp(0)
    if prof:
        A("s_memrealtime s[52:53]")
    A(f"""
    s_cmp_ge_u32 s2, 256
    s_cbranch_scc1 K2_END
    s_load_dwordx2 s[4:5], s[0:1], 80
    v_and_b32 v1, 63, v0
    v_lshrrev_b32 v2, 6, v0
    s_and_b32 s{sHead}, s2, 7
    v_readfirstlane_b32 s{sWave}, v2
    s_lshl_b32 s{sHead}, s{sHead}, 2
    s_lshr_b32 s{sQb}, s2, 6
    s_add_u32 s{sHead}, s{sHead}, s{sQb}
    s_lshr_b32 s{sQb}, s2, 3
    s_and_b32 s{sQb}, s{sQb}, 7
    v_and_b32 v5, 31, v1
    v_lshrrev_b32 v6, 5, v1
    v_lshlrev_b32 v{vLane16}, 4, v1
    v_mul_u32_u24 v{vK1a}, 40, v5
    v_add_u32 v{vK2a}, 32, v{vK1a}
    v_lshl_add_u32 v{vK1a}, v6, 4, v{vK1a}
    v_mul_u32_u24 v{vVa}, 320, v6
    v_lshl_add_u32 v{vVa}, v5, 4, v{vVa}
    v_add_u32 v{vVa}, 1280, v{vVa}
    s_mov_b32 s{sMask}, 0x000fffff
    s_mov_b32 s{sMask+1}, 0x000fffff
    v_mov_b32 v{Q2}, 0
    v_mov_b32 v{Q2+1}, 0
    s_waitcnt lgkmcnt(0)
    s_mov_b32 s8, s4
    s_and_b32 s9, s5, 0xffff
    s_mov_b32 s10, {WS_SIZE}
    s_mov_b32 s11, 0x00020000
    ; Q loads
    s_mul_i32 s{sOff}, s{sHead}, 81920
    s_lshl_b32 s24, s{sQb}, 8
    s_lshl_b32 s25, s{sWave}, 5
    s_add_u32 s24, s24, s25
    s_mul_i32 s25, s24, 40
    s_add_u32 s{sOff}, s{sOff}, s25
    s_add_u32 s{sOff}, s{sOff}, {WS_Q}
    buffer_load_dwordx4 {vr(Q1,4)}, v{vK1a}, s[8:11], s{sOff} offen
    s_mov_b32 exec_hi, 0
    buffer_load_dwordx2 {vr(Q2,2)}, v{vK2a}, s[8:11], s{sOff} offen
    s_mov_b32 exec_hi, -1
    s_mul_i32 s{sOff}, s{sHead}, 163840
    s_lshl_b32 s25, s{sWave}, 10
    s_add_u32 s{sOff}, s{sOff}, s25
    s_add_u32 s{sOff}, s{sOff}, {WS_KV}
    s_mov_b32 m0, s25
    """)
    for i in range(20):
        A(f"buffer_load_dwordx4 v{vLane16}, s[8:11], s{sOff} offen lds")
        if i < 19:
            A(f"s_add_u32 m0, m0, 8192")
            A(f"s_add_u32 s{sOff}, s{sOff}, 8192")
    for b in VB:
        for r in range(8):
            A(f"v_mov_b32 v{b+r}, 0x3f803f80")
    A(f"""
    s_mov_b32 s{sFlag}, 0
    s_mov_b32 s{sNs}, {nsamp}
    s_mov_b32 s{sOffs}, {hex(f2u(-offset))}
    s_waitcnt vmcnt(16)
    s_barrier
    """)
    stamp(1)
    if cfg.get("solo"):
        A(f"s_cmp_ge_u32 s{sWave}, 4")
        A("s_cbranch_scc1 K2_END")
    A.label("K2_SAMPLE")
    vA, vB2, vMax = T, T+1, T+2
    KB1, KB2 = P0, P1
    A(f"""
    v_mov_b32 v{vA}, v{vK1a}
    v_mov_b32 v{vB2}, v{vK2a}
    v_mov_b32 v{vMax}, 0xff800000
    s_mov_b32 s{sCnt}, s{sNs}
    ds_read_b64 {vr(KF1,2)}, v{vA}
    ds_read_b64 {vr(KF1+2,2)}, v{vA} offset:8
    ds_read_b64 {vr(KF2,2)}, v{vB2}
    ds_read_b64 {vr(KB1,2)}, v{vA} offset:2560
    ds_read_b64 {vr(KB1+2,2)}, v{vA} offset:2568
    ds_read_b64 {vr(KB2,2)}, v{vB2} offset:2560
    """)
    A.label("K2_SLOOP")
    A(f"""
    s_waitcnt lgkmcnt(0)
    v_mfma_f32_32x32x16_bf16 {vr(S[0],16)}, {vr(KF1,4)}, {vr(Q1,4)}, 0
    v_mfma_f32_32x32x16_bf16 {vr(S[1],16)}, {vr(KB1,4)}, {vr(Q1,4)}, 0
    v_mfma_f32_32x32x8_bf16 {vr(S[0],16)}, {vr(KF2,2)}, {vr(Q2,2)}, {vr(S[0],16)}
    v_mfma_f32_32x32x8_bf16 {vr(S[1],16)}, {vr(KB2,2)}, {vr(Q2,2)}, {vr(S[1],16)}
    v_add_u32 v{vA}, 5120, v{vA}
    v_add_u32 v{vB2}, 5120, v{vB2}
    ds_read_b64 {vr(KF1,2)}, v{vA}
    ds_read_b64 {vr(KF1+2,2)}, v{vA} offset:8
    ds_read_b64 {vr(KF2,2)}, v{vB2}
    ds_read_b64 {vr(KB1,2)}, v{vA} offset:2560
    ds_read_b64 {vr(KB1+2,2)}, v{vA} offset:2568
    ds_read_b64 {vr(KB2,2)}, v{vB2} offset:2560
    s_nop 4
    """)
    for s in range(2):
        for r in range(0, 16, 2):
            A(f"v_max3_f32 v{vMax}, v{S[s]+r}, v{S[s]+r+1}, v{vMax}")
    A(f"""
    s_sub_u32 s{sCnt}, s{sCnt}, 1
    s_cmp_lg_u32 s{sCnt}, 0
    s_cbranch_scc1 K2_SLOOP
    v_mov_b32 v{vA}, v{vMax}
    s_waitcnt lgkmcnt(0)
    s_nop 0
    v_permlane32_swap_b32 v{vA}, v{vMax}
    s_nop 1
    v_max_f32 v{vMax}, v{vMax}, v{vA}
    v_sub_f32 v{NEGM}, s{sOffs}, v{vMax}
    """)
    for r in range(1, 16):
        A(f"v_mov_b32 v{NEGM+r}, v{NEGM}")
    for r in range(16):
        A(f"v_mov_b32 v{O+r}, 0")
    for r in range(4):
        A(f"v_mov_b32 v{P1+r}, 0")
    if cfg.get("sched", "A") in ("C", "F"):
        for r in range(12, 16):
            A(f"v_mov_b32 v{S[1]+r}, 0")
    wK1, wK2, wV = T+4, T+5, T+6
    A(f"""
    v_mov_b32 v{wK1}, v{vK1a}
    v_mov_b32 v{wK2}, v{vK2a}
    v_mov_b32 v{wV}, v{vVa}
    ds_read_b64 {vr(KF1,2)}, v{wK1}
    ds_read_b64 {vr(KF1+2,2)}, v{wK1} offset:8
    ds_read_b64 {vr(KF2,2)}, v{wK2}
    s_mov_b64 exec, s[{sMask}:{sMask+1}]
    ds_read_b128 {vr(VB[0],4)}, v{wV}
    ds_read_b128 {vr(VB[0]+4,4)}, v{wV} offset:640
    s_mov_b64 exec, -1
    s_waitcnt lgkmcnt(2)
    v_mfma_f32_32x32x16_bf16 {vr(S[0],16)}, {vr(KF1,4)}, {vr(Q1,4)}, {vr(NEGM,16)}
    v_mfma_f32_32x32x8_bf16 {vr(S[0],16)}, {vr(KF2,2)}, {vr(Q2,2)}, {vr(S[0],16)}
    ds_read_b64 {vr(KF1,2)}, v{wK1} offset:2560
    ds_read_b64 {vr(KF1+2,2)}, v{wK1} offset:2568
    ds_read_b64 {vr(KF2,2)}, v{wK2} offset:2560
    s_mov_b32 s{sCnt}, 0
    s_nop 7
    """)
    stamp(2)
    if cfg.get("flip") is not None:
        A(f"""
        s_setprio 1
        s_cmp_ge_u32 s{sWave}, 4
        s_cbranch_scc1 K2_PRIO_DONE
        s_setprio 2
        """)
        A.label("K2_PRIO_DONE")
    A(".p2align 6")
    A.label("K2_LOOP")
    UN = 8
    sched = cfg.get("sched", "A")
    for u in range(UN):
        Sc, Sn = S[u & 1], S[(u + 1) & 1]
        Vc, Vn = VB[u & 1], VB[(u + 1) & 1]
        ko = (u + 2) * 2560
        vo = (u + 1) * 2560
        def E(i): A(f"v_exp_f32 v{Sc+i}, v{Sc+i}")
        def C(j):
            dst = (P0 + j) if j < 4 else (P1 + j - 4)
            A(f"v_cvt_pk_bf16_f32 v{dst}, v{Sc+2*j}, v{Sc+2*j+1}")
        def Cprev(j):
            dst = (P0 + j) if j < 4 else (P1 + j - 4)
            A(f"v_cvt_pk_bf16_f32 v{dst}, v{Sn+2*j}, v{Sn+2*j+1}")
        def W(): A("s_waitcnt lgkmcnt(0)")
        def QK1(): A(f"v_mfma_f32_32x32x16_bf16 {vr(Sn,16)}, {vr(KF1,4)}, {vr(Q1,4)}, {vr(NEGM,16)}")
        def QK2(): A(f"v_mfma_f32_32x32x8_bf16 {vr(Sn,16)}, {vr(KF2,2)}, {vr(Q2,2)}, {vr(Sn,16)}")
        def PVb(): A(f"v_mfma_f32_32x32x16_bf16 {vr(O,16)}, {vr(Vn+4,4)}, {vr(P1,4)}, {vr(O,16)}")
        def PVa(): A(f"v_mfma_f32_32x32x16_bf16 {vr(O,16)}, {vr(Vc,4)}, {vr(P0,4)}, {vr(O,16)}")
        def DK():
            A(f"ds_read_b64 {vr(KF1,2)}, v{wK1} offset:{ko}")
            A(f"ds_read_b64 {vr(KF1+2,2)}, v{wK1} offset:{ko+8}")
            A(f"ds_read_b64 {vr(KF2,2)}, v{wK2} offset:{ko}")
        def DV():
            A(f"s_mov_b64 exec, s[{sMask}:{sMask+1}]")
            A(f"ds_read_b128 {vr(Vn,4)}, v{wV} offset:{vo}")
            A(f"ds_read_b128 {vr(Vn+4,4)}, v{wV} offset:{vo+640}")
            A(f"s_mov_b64 exec, -1")
        if sched == "A":
            W(); QK1(); E(0); E(1); PVb(); E(2); E(3); C(0); C(1); QK2(); E(4); E(5); DK(); E(6); E(7); C(2); C(3)
            E(8); E(9); PVa(); E(10); E(11); C(4); C(5); DV(); E(12); E(13); E(14); E(15); C(6); C(7)
        elif sched == "B":
            W(); QK1(); E(0); E(1); PVb(); E(2); E(3); E(4); C(0); QK2(); E(5); C(1); E(6); DK(); E(7); C(2); E(8); E(9); C(3)
            E(10); E(11); PVa(); E(12); C(4); E(13); DV(); C(5); E(14); E(15); s_=0; A("s_nop 0") if False else None
            C(6); C(7)
        elif sched == "D":
            W(); QK1(); E(0); E(1); PVb(); DV(); E(2); E(3); E(4); C(0); QK2(); E(5); C(1); DK(); E(6); E(7); C(2); E(8); E(9); C(3)
            E(10); E(11); PVa(); E(12); C(4); E(13); C(5); E(14); E(15); C(6); C(7)
        elif sched == "E":
            def DV2():
                A(f"ds_read_b128 {vr(Vn,4)}, v{wV} offset:{vo}")
                A(f"ds_read_b128 {vr(Vn+4,4)}, v{wV} offset:{vo+640}")
            W(); QK1(); E(0); E(1); PVb(); DV2(); E(2); E(3); E(4); C(0); QK2(); E(5); C(1); DK(); E(6); E(7); C(2); E(8); E(9); C(3)
            E(10); E(11); PVa(); E(12); C(4); E(13); C(5); E(14); E(15); C(6); C(7)
        elif sched == "F":
            Cprev(6); Cprev(7); W(); QK1(); E(0); E(1); E(2); PVb(); DV(); E(3); E(4); C(0); QK2(); E(5); C(1); DK(); E(6); E(7); C(2); E(8); E(9); C(3)
            E(10); E(11); PVa(); E(12); C(4); E(13); C(5); E(14); E(15)
        elif sched == "C":
            Cprev(6); Cprev(7); W(); QK1(); E(0); E(1); E(2); PVb(); E(3); E(4); C(0); QK2(); E(5); C(1); E(6); DK(); E(7); C(2); E(8); E(9); C(3)
            E(10); E(11); PVa(); E(12); C(4); E(13); DV(); C(5); E(14); E(15)
        if cfg.get("flip") is not None:
            pass
    A(f"""
    v_add_u32 v{wK1}, {UN*2560}, v{wK1}
    v_add_u32 v{wK2}, {UN*2560}, v{wK2}
    v_add_u32 v{wV}, {UN*2560}, v{wV}
    s_add_u32 s{sCnt}, s{sCnt}, 1
    s_cmp_eq_u32 s{sCnt}, 1
    s_cbranch_scc1 K2_BAR2
    """)
    A.label("K2_BAR2_RET")
    if cfg.get("flip") is not None:
        A(f"""
        s_cmp_lg_u32 s{sCnt}, {cfg["flip"]}
        s_cbranch_scc1 K2_NOFLIP
        s_cmp_ge_u32 s{sWave}, 4
        s_cbranch_scc1 K2_NOFLIP
        s_setprio 0
        """)
        A.label("K2_NOFLIP")
    A(f"""
    s_cmp_lt_u32 s{sCnt}, {64//UN}
    s_cbranch_scc1 K2_LOOP
    v_mfma_f32_32x32x16_bf16 {vr(O,16)}, {vr(VB[0]+4,4)}, {vr(P1,4)}, {vr(O,16)}
    """)
    A.lines.pop()
    if sched in ("C", "F"):
        A(f"v_cvt_pk_bf16_f32 v{P1+2}, v{S[1]+12}, v{S[1]+13}")
        A(f"v_cvt_pk_bf16_f32 v{P1+3}, v{S[1]+14}, v{S[1]+15}")
        A("s_nop 1")
    A(f"v_mfma_f32_32x32x16_bf16 {vr(O,16)}, {vr(VB[1]+4,4)}, {vr(P1,4)}, {vr(O,16)}")
    stamp(3)
    A(f"""
    s_waitcnt lgkmcnt(0)
    s_nop 15
    s_nop 3
    v_mov_b32 v{T}, v{O+8}
    v_mov_b32 v{T+1}, v{O+8}
    s_nop 1
    v_permlane32_swap_b32 v{T+1}, v{T}
    v_maximum3_f32 v{T+2}, |v{O}|, |v{O+1}|, |v{O+2}|
    v_maximum3_f32 v{T+2}, |v{O+3}|, |v{O+4}|, v{T+2}
    v_maximum3_f32 v{T+2}, |v{O+5}|, |v{O+6}|, v{T+2}
    v_maximum3_f32 v{T+2}, |v{O+7}|, v{T+2}, v{T+2}
    v_maximum3_f32 v{T+3}, |v{O+8}|, |v{O+9}|, |v{O+10}|
    v_maximum3_f32 v{T+3}, |v{O+11}|, v{T+3}, v{T+2}
    v_maximum3_f32 v{T+3}, v{T+3}, |v{T}|, |v{T}|
    ; ok = (T3 < 2^120) && (T2 >= 2^-90)
    v_mov_b32 v{T+4}, {hex(f2u(2.0**120))}
    v_mov_b32 v{T+5}, {hex(f2u(2.0**-90))}
    v_cmp_lt_f32 vcc, v{T+3}, v{T+4}
    v_cmp_ge_f32 s[26:27], v{T+2}, v{T+5}
    s_nop 1
    s_and_b64 s[26:27], s[26:27], vcc
    s_cmp_eq_u64 s[26:27], -1
    s_cbranch_scc1 K2_FIN
    s_cmp_lg_u32 s{sFlag}, 0
    s_cbranch_scc1 K2_FIN
    s_mov_b32 s{sFlag}, 1
    s_mov_b32 s{sNs}, 32
    s_mov_b32 s{sOffs}, 0
    s_branch K2_SAMPLE
    """)
    A.label("K2_FIN")
    A(f"v_rcp_f32 v{T+1}, v{T}")
    A("s_nop 0")
    for r in range(12):
        A(f"v_mul_f32 v{O+r}, v{O+r}, v{T+1}")
    for j in range(6):
        A(f"v_cvt_pk_bf16_f32 v{P0+j}, v{O+2*j}, v{O+2*j+1}")
    A(f"""
    s_lshr_b32 s24, s24, 5
    s_mul_i32 s24, s24, 40
    s_lshr_b32 s25, s{sHead}, 2
    s_mul_i32 s25, s25, 5
    s_add_u32 s24, s24, s25
    s_and_b32 s25, s{sHead}, 3
    s_add_u32 s28, s24, s25
    s_lshl_b32 s28, s28, 10
    s_add_u32 s28, s28, {WS_O}
    buffer_store_dwordx4 {vr(P0,4)}, v{vLane16}, s[8:11], s28 offen
    s_add_u32 s28, s24, 4
    s_lshl_b32 s28, s28, 10
    s_lshr_b32 s29, s25, 1
    s_lshl_b32 s29, s29, 9
    s_add_u32 s28, s28, s29
    s_and_b32 s29, s25, 1
    s_lshl_b32 s29, s29, 3
    s_add_u32 s28, s28, s29
    s_add_u32 s28, s28, {WS_O}
    s_mov_b32 exec_hi, 0
    buffer_store_dwordx2 {vr(P1,2)}, v{vLane16}, s[8:11], s28 offen
    """)
    if prof:
        stamp(4)
        A("s_memrealtime s[50:51]")
        A(f"""
        s_load_dwordx2 s[30:31], s[0:1], 72
        s_waitcnt lgkmcnt(0)
        s_mov_b64 exec, 1
        s_cmp_lg_u32 s2, 0
        s_cbranch_scc1 K2_END
        s_lshl_b32 s32, s{sWave}, 5
        v_mov_b32 v1, s32
        s_sub_u32 s42, s42, s40
        s_sub_u32 s44, s44, s40
        s_sub_u32 s46, s46, s40
        s_sub_u32 s48, s48, s40
        v_mov_b32 v2, s42
        v_mov_b32 v3, s44
        v_mov_b32 v4, s46
        v_mov_b32 v5, s48
        global_store_dwordx4 v1, v[2:5], s[30:31]
        s_sub_u32 s50, s50, s52
        v_mov_b32 v2, s50
        global_store_dword v1, v2, s[30:31] offset:16
        """)
    A("s_endpgm")
    A.label("K2_BAR2")
    A(f"""
    s_cmp_lg_u32 s{sFlag}, 0
    s_cbranch_scc1 K2_BAR2_RET
    s_waitcnt vmcnt(0)
    s_barrier
    s_branch K2_BAR2_RET
    """)
    A.label("K2_END")
    A("s_endpgm")
    kernel_footer(A, name, 120, 64)
```

```python
from asmlib import *
from gen_k2 import WS_Q, WS_KV, WS_H, WS_O, WS_W2F, WS_WOF, WS_PART, WS_SIZE, f2u


def gen_k2b(A, name="k2b_kernel", cfg=None):
    cfg = cfg or {}
    kernel_header(A, name)
    ACC0, ACC1 = 16, 32
    NST = 4
    HB, WB, XB = 48, 64, 80
    A(f"""
    s_cmp_ge_u32 s2, 256
    s_cbranch_scc1 K2B_END
    s_load_dwordx2 s[4:5], s[0:1], 80
    v_and_b32 v1, 63, v0
    v_lshrrev_b32 v2, 6, v0
    v_lshlrev_b32 v3, 4, v1
    v_readfirstlane_b32 s14, v2
    s_lshr_b32 s12, s2, 2            ; tt
    s_and_b32 s13, s2, 3             ; cg
    s_waitcnt lgkmcnt(0)
    s_mov_b32 s8, s4
    s_and_b32 s9, s5, 0xffff
    s_mov_b32 s10, {WS_SIZE}
    s_mov_b32 s11, 0x00020000
    s_mul_i32 s16, s12, {96*1024}
    s_add_u32 s16, s16, {WS_H}
    s_mul_i32 s17, s13, 5
    s_add_u32 s18, s17, 4
    s_add_u32 s17, s17, s14
    s_mul_i32 s17, s17, {96*1024}
    s_add_u32 s17, s17, {WS_W2F}
    s_mul_i32 s18, s18, {96*1024}
    s_add_u32 s18, s18, {WS_W2F}
    s_mul_i32 s19, s14, 24
    """)
    for r in range(32): A(f"v_mov_b32 v{16+r}, 0")
    def body(extra, tag):
        A.label(f"K2B_L{tag}")
        for st in range(NST):
            nxt = (st + NST - 1) % NST
            A(f"buffer_load_dwordx4 {vr(HB+4*nxt,4)}, v3, s[8:11], s20 offen")
            A(f"buffer_load_dwordx4 {vr(WB+4*nxt,4)}, v3, s[8:11], s21 offen")
            A(f"buffer_load_dwordx4 {vr(XB+4*nxt,4)}, v3, s[8:11], s22 offen")
            A("s_add_u32 s20, s20, 1024"); A("s_add_u32 s21, s21, 1024"); A("s_add_u32 s22, s22, 1024")
            A(f"s_waitcnt vmcnt({3*(NST-1)})")
            A(f"v_mfma_f32_32x32x16_bf16 {vr(ACC0,16)}, {vr(WB+4*st,4)}, {vr(HB+4*st,4)}, {vr(ACC0,16)}")
            if extra:
                A(f"v_mfma_f32_32x32x16_bf16 {vr(ACC1,16)}, {vr(XB+4*st,4)}, {vr(HB+4*st,4)}, {vr(ACC1,16)}")
        A("s_sub_u32 s23, s23, 1")
        A("s_cmp_lg_u32 s23, 0")
        A(f"s_cbranch_scc1 K2B_L{tag}")
    A("s_mov_b32 s20, s16"); A("s_mov_b32 s21, s17"); A("s_mov_b32 s22, s18")
    for st in range(NST-1):
        A(f"buffer_load_dwordx4 {vr(HB+4*st,4)}, v3, s[8:11], s20 offen")
        A(f"buffer_load_dwordx4 {vr(WB+4*st,4)}, v3, s[8:11], s21 offen")
        A(f"buffer_load_dwordx4 {vr(XB+4*st,4)}, v3, s[8:11], s22 offen")
        A("s_add_u32 s20, s20, 1024"); A("s_add_u32 s21, s21, 1024"); A("s_add_u32 s22, s22, 1024")
    A("s_mov_b32 s24, 0")
    A.label("K2B_SEG")
    A("s_mov_b32 s23, 6")
    A("s_cmp_eq_u32 s24, s14")
    A("s_cbranch_scc1 K2B_X")
    body(False, "N")
    A("s_branch K2B_SEGE")
    A.label("K2B_X")
    body(True, "X")
    A.label("K2B_SEGE")
    A(f"""
    s_add_u32 s24, s24, 1
    s_cmp_lt_u32 s24, 4
    s_cbranch_scc1 K2B_SEG
    s_nop 15
    s_nop 3
    s_lshl_b32 s16, s2, 15
    s_lshl_b32 s17, s14, 12
    s_add_u32 s16, s16, s17
    s_add_u32 s16, s16, {WS_PART}
    """)
    for g in range(4):
        A(f"buffer_store_dwordx4 {vr(ACC0+4*g,4)}, v3, s[8:11], s16 offen offset:{1024*g}")
    A("s_add_u32 s16, s16, 16384")
    for g in range(4):
        A(f"buffer_store_dwordx4 {vr(ACC1+4*g,4)}, v3, s[8:11], s16 offen offset:{1024*g}")
    A.label("K2B_END")
    A("s_endpgm")
    kernel_footer(A, name, 96, 32)

def gen_k3(A, name="k3_kernel", cfg=None):
    cfg = cfg or {}
    kernel_header(A, name)
    ACC0, ACC1 = 16, 32
    WB = 48
    XB = 208
    OB = 4
    A(f"""
    s_cmp_ge_u32 s2, 256
    s_cbranch_scc1 K3_END
    s_load_dwordx2 s[4:5], s[0:1], 80
    s_load_dwordx2 s[24:25], s[0:1], 0       ; x
    s_load_dwordx4 s[28:31], s[0:1], 56      ; b2, out
    v_and_b32 v1, 63, v0
    v_lshrrev_b32 v2, 6, v0
    v_lshlrev_b32 v3, 4, v1
    v_readfirstlane_b32 s14, v2
    s_lshr_b32 s12, s2, 2            ; tt
    s_and_b32 s13, s2, 3             ; cg
    s_waitcnt lgkmcnt(0)
    s_mov_b32 s8, s4
    s_and_b32 s9, s5, 0xffff
    s_mov_b32 s10, {WS_SIZE}
    s_mov_b32 s11, 0x00020000
    s_mul_i32 s16, s12, {40*1024}
    s_mul_i32 s17, s14, {10*1024}
    s_add_u32 s16, s16, s17
    s_add_u32 s16, s16, {WS_O}
    s_mov_b32 m0, s17
    """)
    for i in range(10):
        A("buffer_load_dwordx4 v3, s[8:11], s16 offen lds")
        if i < 9:
            A("s_add_u32 m0, m0, 1024"); A("s_add_u32 s16, s16, 1024")
    A(f"""
    s_lshl_b32 s16, s2, 15
    s_lshl_b32 s17, s14, 12
    s_add_u32 s16, s16, s17
    s_add_u32 s16, s16, {WS_PART}
    """)
    for g in range(4):
        A(f"buffer_load_dwordx4 {vr(ACC0+4*g,4)}, v3, s[8:11], s16 offen offset:{1024*g}")
    A("s_add_u32 s16, s16, 16384")
    for g in range(4):
        A(f"buffer_load_dwordx4 {vr(ACC1+4*g,4)}, v3, s[8:11], s16 offen offset:{1024*g}")
    A(f"""
    s_mul_i32 s17, s13, 5
    s_add_u32 s18, s17, 4
    s_add_u32 s17, s17, s14
    s_mul_i32 s17, s17, {40*1024}
    s_add_u32 s17, s17, {WS_WOF}
    s_mul_i32 s18, s18, {40*1024}
    s_mul_i32 s19, s14, {10*1024}
    s_add_u32 s18, s18, s19
    s_add_u32 s18, s18, {WS_WOF}
    """)
    for i in range(10):
        if i % 4 == 0 and i > 0: A("s_add_u32 s18, s18, 4096")
        A(f"buffer_load_dwordx4 {vr(XB+4*i,4)}, v3, s[8:11], s18 offen offset:{1024*(i%4)}")
    for i in range(40):
        if i % 4 == 0 and i > 0: A("s_add_u32 s17, s17, 4096")
        A(f"buffer_load_dwordx4 {vr(WB+4*i,4)}, v3, s[8:11], s17 offen offset:{1024*(i%4)}")
    A("s_waitcnt vmcnt(58)")
    A("s_barrier")
    A("s_mul_i32 s19, s14, 10240")
    A("v_add_u32 v12, s19, v3")
    for i in range(10):
        A(f"ds_read_b128 {vr(OB+4*(i%2),4)}, v12 offset:{1024*i}")
        if i == 0: A("s_waitcnt vmcnt(40)")
        A("s_waitcnt lgkmcnt(0)")
        A(f"v_mfma_f32_32x32x16_bf16 {vr(ACC1,16)}, {vr(XB+4*i,4)}, {vr(OB+4*(i%2),4)}, {vr(ACC1,16)}")
    for i in range(40):
        A(f"ds_read_b128 {vr(OB+4*(i%2),4)}, v3 offset:{1024*i}")
        A(f"s_waitcnt vmcnt({39-i})")
        A("s_waitcnt lgkmcnt(0)")
        A(f"v_mfma_f32_32x32x16_bf16 {vr(ACC0,16)}, {vr(WB+4*i,4)}, {vr(OB+4*(i%2),4)}, {vr(ACC0,16)}")
    A(f"""
    s_nop 15
    s_lshl_b32 s19, s14, 12
    s_add_u32 s19, s19, 40960
    v_add_u32 v12, s19, v3
    """)
    for g in range(4):
        A(f"ds_write_b128 v12, {vr(ACC1+4*g,4)} offset:{1024*g}")
    A(f"""
    v_and_b32 v5, 31, v1
    v_lshrrev_b32 v6, 5, v1
    s_lshl_b32 s16, s12, 5                    ; token0
    v_add_u32 v7, s16, v5                     ; token
    v_mul_u32_u24 v7, 1280, v7
    v_lshl_add_u32 v7, v6, 3, v7              ; + h*8 bytes
    s_mul_i32 s17, s13, 320
    s_lshl_b32 s18, s14, 6
    s_add_u32 s18, s18, s17
    s_add_u32 s17, s17, 256
    s_lshl_b32 s19, s14, 4
    s_add_u32 s17, s17, s19
    v_add_u32 v8, s18, v7                     ; own: + g*16
    v_add_u32 v9, s17, v7
    v_lshlrev_b32 v10, 3, v6
    v_add_u32 v11, s17, v10                   ; b2 offsets
    v_add_u32 v10, s18, v10
    """)
    XR = 48; BR = 64
    for g in range(4):
        A(f"global_load_dwordx2 {vr(XR+2*g,2)}, v8, s[24:25] offset:{16*g}")
    A(f"global_load_dwordx2 {vr(XR+8,2)}, v9, s[24:25]")
    for g in range(4):
        A(f"global_load_dwordx2 {vr(BR+2*g,2)}, v10, s[28:29] offset:{16*g}")
    A(f"global_load_dwordx2 {vr(BR+8,2)}, v11, s[28:29]")
    A("s_waitcnt lgkmcnt(0)")
    A("s_barrier")
    A("s_lshl_b32 s19, s14, 10")
    A("s_add_u32 s19, s19, 40960")
    A("v_add_u32 v12, s19, v3")
    RB = 80
    for k in range(4):
        A(f"ds_read_b128 {vr(RB+4*k,4)}, v12 offset:{4096*k}")
    A("s_waitcnt lgkmcnt(0)")
    for i in range(4):
        A(f"v_add_f32 v{RB+i}, v{RB+i}, v{RB+4+i}")
        A(f"v_add_f32 v{RB+8+i}, v{RB+8+i}, v{RB+12+i}")
        A(f"v_add_f32 v{RB+i}, v{RB+i}, v{RB+8+i}")
    A("s_waitcnt vmcnt(0)")
    def addbf(dst, src_reg, hi):
        t = 100
        if hi: A(f"v_and_b32 v{t}, 0xffff0000, v{src_reg}")
        else:  A(f"v_lshlrev_b32 v{t}, 16, v{src_reg}")
        A(f"v_add_f32 v{dst}, v{dst}, v{t}")
    for g in range(4):
        for i in range(4):
            addbf(ACC0+4*g+i, XR+2*g+(i>>1), i & 1)
            addbf(ACC0+4*g+i, BR+2*g+(i>>1), i & 1)
    for i in range(4):
        addbf(RB+i, XR+8+(i>>1), i & 1)
        addbf(RB+i, BR+8+(i>>1), i & 1)
    PK = 104
    for g in range(4):
        A(f"v_cvt_pk_bf16_f32 v{PK+2*g}, v{ACC0+4*g}, v{ACC0+4*g+1}")
        A(f"v_cvt_pk_bf16_f32 v{PK+2*g+1}, v{ACC0+4*g+2}, v{ACC0+4*g+3}")
    A(f"v_cvt_pk_bf16_f32 v{PK+8}, v{RB}, v{RB+1}")
    A(f"v_cvt_pk_bf16_f32 v{PK+9}, v{RB+2}, v{RB+3}")
    for g in range(4):
        A(f"global_store_dwordx2 v8, {vr(PK+2*g,2)}, s[30:31] offset:{16*g}")
    A(f"global_store_dwordx2 v9, {vr(PK+8,2)}, s[30:31]")
    A.label("K3_END")
    A("s_endpgm")
    kernel_footer(A, name, 248, 40)
```

```python
import sys
from asmlib import *
import gen_k1, gen_k2, gen_k3
NAME = "parallel_sum__softmax_full_mha__dense_activation_squared_relu__prompt"
def build(mode="full", cfg=None):
    A = Asm()
    hdr = []
    if mode == "k2only":
        hdr.append("; @launch kernel=k2_kernel grid=(256,1,1) block=(512,1,1) lds=163840")
    else:
        hdr.append(f"; @launch kernel=k1_kernel grid=(256,1,1) block=(512,1,1) lds={gen_k1.K1_LDS}")
        hdr.append("; @launch kernel=k2_kernel grid=(256,1,1) block=(512,1,1) lds=163840")
        hdr.append("; @launch kernel=k2b_kernel grid=(256,1,1) block=(256,1,1) lds=0")
        hdr.append("; @launch kernel=k3_kernel grid=(256,1,1) block=(256,1,1) lds=57344")
    A.lines += hdr
    A('.amdgcn_target "amdgcn-amd-amdhsa--gfx950"')
    if mode != "k2only":
        gen_k1.gen_k1(A, "k1_kernel", cfg)
    gen_k2.gen_k2(A, "k2_kernel", cfg)
    if mode != "k2only":
        gen_k3.gen_k2b(A, "k2b_kernel", cfg)
        gen_k3.gen_k3(A, "k3_kernel", cfg)
    return A.text()
if __name__ == "__main__":
    mode = sys.argv[1]; out = sys.argv[2]
    cfg = {}
    for a in sys.argv[3:]:
        k, v = a.split("=")
        cfg[k] = eval(v)
    open(out, "w").write(build(mode, cfg))
```

```python
from asmlib import *
from gen_k2 import WS_Q, WS_KV, WS_H, WS_O, WS_W2F, WS_WOF, WS_PART, WS_SIZE, f2u

C_Q = 20**-0.5 * 1.4426950408889634
RING = 45056
L_ST  = 3*RING
L_CSP = L_ST + 2048
L_B1  = L_CSP + 3584
L_SIDE= 141824
K1_LDS = L_SIDE + 12288
WS_RS2 = 0x12F0000
VROW = 328

def gen_k1(A, name="k1_kernel", cfg=None):
    cfg = cfg or {}
    prof = cfg.get("prof1", False)
    SRD_X, SRD_WQ, SRD_W1, SRD_WS, SRD_T = 8, 12, 16, 20, 24
    sRb, sCg, sW, sR = 28, 29, 30, 31
    sC = 32
    sRingD = 33
    sDelta = 34
    sRingI = 35
    sSo = 36
    sCol = 48
    sTT = 55
    sGw = 56
    sT = 58
    def stamp(i):
        if prof: A(f"s_memtime s[{72+2*i}:{73+2*i}]")

    vLane, vM, vHh, vL16 = 1, 2, 3, 4

    kernel_header(A, name)
    stamp(0)
    A(f"""
    s_cmp_ge_u32 s2, 256
    s_cbranch_scc1 K1_END
    s_load_dwordx4 s[4:7], s[0:1], 0        ; x, wqkv
    s_load_dwordx4 s[64:67], s[0:1], 32     ; w1, b1
    s_load_dwordx2 s[20:21], s[0:1], 80     ; ws
    s_load_dwordx2 s[60:61], s[0:1], 16     ; wo
    s_load_dwordx2 s[62:63], s[0:1], 48     ; w2
    v_and_b32 v{vLane}, 63, v0
    v_lshrrev_b32 v9, 6, v0
    v_and_b32 v{vM}, 31, v{vLane}
    v_readfirstlane_b32 s{sW}, v9
    v_lshrrev_b32 v{vHh}, 5, v{vLane}
    v_lshlrev_b32 v{vL16}, 4, v{vLane}
    s_and_b32 s58, s2, 7
    s_lshr_b32 s59, s2, 3
    s_and_b32 s{sRb}, s58, 1
    s_lshl_b32 s{sRb}, s{sRb}, 3
    s_and_b32 s{sCg}, s59, 7
    s_add_u32 s{sRb}, s{sRb}, s{sCg}       ; rb = 8*(x&1) + (j&7)
    s_lshr_b32 s{sCg}, s58, 1
    s_lshl_b32 s{sCg}, s{sCg}, 2
    s_lshr_b32 s59, s59, 3
    s_add_u32 s{sCg}, s{sCg}, s59          ; cg = 4*(x>>1) + (j>>3)
    """)
    if cfg.get("samedata"):
        A(f"s_mov_b32 s{sRb}, 0")
        A(f"s_mov_b32 s{sCg}, 2")
    A(f"""
    s_and_b32 s{sR}, s{sW}, 3
    s_lshl_b32 s{sTT}, s{sRb}, 2
    s_add_u32 s{sTT}, s{sTT}, s{sR}
    s_cmp_ge_u32 s{sCg}, 12
    s_cbranch_scc1 K1_COLB
    s_mul_i32 s58, s{sCg}, 320
    s_mov_b32 s{sCol+0}, s58
    s_add_u32 s{sCol+1}, s58, 64
    s_add_u32 s{sCol+2}, s58, 128
    s_add_u32 s{sCol+3}, s58, 192
    s_add_u32 s{sCol+4}, s58, 256
    s_lshl_b32 s58, s{sCg}, 7
    s_mov_b32 s{sCol+5}, s58
    s_add_u32 s{sCol+6}, s58, 64
    s_branch K1_COLD
    """)
    A.label("K1_COLB")
    A(f"""
    s_sub_u32 s58, s{sCg}, 12
    s_mul_i32 s58, s58, 384                ; 6 tiles * 64B
    s_add_u32 s58, s58, {24*64}
    s_mov_b32 s{sCol+0}, s58
    s_add_u32 s{sCol+1}, s58, 64
    s_add_u32 s{sCol+2}, s58, 128
    s_mov_b32 s{sCol+3}, 0
    s_add_u32 s{sCol+4}, s58, 192
    s_add_u32 s{sCol+5}, s58, 256
    s_add_u32 s{sCol+6}, s58, 320
    """)
    A.label("K1_COLD")
    A(f"""
    s_mov_b32 s{sC}, 0
    s_cmp_ge_u32 s{sW}, 8
    s_cbranch_scc1 K1_LOADER
    """)
    vXa = 10
    vWa = 14
    vWB0, vWB1 = 19, 9
    vS = 15
    SEL = 20
    BUF = [24, 44]
    ACC = 64
    CSA = 128
    T = 144
    A(f"""
    s_setprio {cfg.get("prio0", 1)}
    v_lshrrev_b32 v9, 1, v{vM}
    v_and_b32 v9, 7, v9
    s_lshl_b32 s58, s{sR}, 12
    v_lshlrev_b32 v5, 7, v{vM}
    v_add_u32 v5, s58, v5
    """)
    for q in range(4):
        A(f"""
        v_add_u32 v6, {2*q}, v{vHh}
        v_xor_b32 v6, v6, v9
        v_lshl_add_u32 v{vXa+q}, v6, 4, v5
        """)
    A(f"""
    v_lshrrev_b32 v9, 5, v{vLane}
    v_lshlrev_b32 v9, 9, v9
    v_bfe_u32 v5, v{vLane}, 2, 2
    v_lshl_add_u32 v9, v5, 6, v9
    v_bfe_u32 v5, v{vLane}, 4, 1
    v_lshl_add_u32 v9, v5, 5, v9
    v_and_b32 v6, 3, v{vLane}
    v_lshl_add_u32 v9, v6, 3, v9
    v_add_u32 v{vWa}, 16384, v9
    s_cmp_ge_u32 s{sCg}, 12
    s_cbranch_scc1 K1_OLDW
    v_lshrrev_b32 v7, 5, v{vLane}
    v_bfe_u32 v8, v{vLane}, 2, 2
    v_lshl_add_u32 v7, v7, 3, v8            ; 8*(G>>1) + r4
    v_lshlrev_b32 v8, 5, v5                 ; (G&1)*32
    v_lshl_add_u32 v8, v6, 3, v8            ; + c4*8
    v_mul_u32_u24 v{vWa}, 320, v7
    v_add_u32 v{vWa}, v{vWa}, v8
    v_add_u32 v{vWa}, 16384, v{vWa}
    v_lshl_add_u32 v{vWB0}, v7, 7, v8
    v_add_u32 v{vWB0}, 36864, v{vWB0}
    v_bfe_u32 v7, v{vLane}, 3, 1
    v_lshlrev_b32 v7, 6, v7
    v_xor_b32 v8, 64, v7
    v_add_u32 v9, v{vWB0}, v8
    v_add_u32 v{vWB0}, v{vWB0}, v7
    """)
    A.label("K1_OLDW")
    A(f"""
    v_and_b32 v6, 1, v{vLane}
    v_cmp_eq_u32 vcc, v5, v6
    v_mov_b32 v6, 0x3f803f80
    s_nop 0
    v_cndmask_b32 v{SEL}, 0, v6, vcc
    v_mov_b32 v{SEL+1}, v{SEL}
    v_mov_b32 v{SEL+2}, v{SEL}
    v_mov_b32 v{SEL+3}, v{SEL}
    s_mov_b32 s{sRingI}, 0
    """)
    for r in range(4): A(f"v_mov_b32 v{vS+r}, 0")
    for r in range(64): A(f"v_mov_b32 v{ACC+r}, 0")
    for r in range(16): A(f"v_mov_b32 v{CSA+r}, 0")
    for r in range(20): A(f"v_mov_b32 v{BUF[1]+r}, 0")
    A(f"""
    s_cmp_ge_u32 s{sW}, 4
    s_cbranch_scc1 K1_CH1
    s_cmp_ge_u32 s{sCg}, 12
    s_cbranch_scc1 K1_CH0B
    """)

    def gen_path(tag, ch, types):
        nsl = len(types)
        A.label(f"K1_{tag}")
        def rd_x(q, buf):
            return [f"ds_read_b128 {vr(BUF[buf],4)}, v{vXa+q}"]
        newl = tag.endswith("A")
        def rd_w(q, buf, i):
            s_ = types[i][0]
            B = BUF[buf]
            if not newl:
                reg, off, hstep = vWa, (s_*4 + q)*1024, 256
            elif s_ < 5:
                reg, off, hstep = vWa, q*5120 + s_*64, 1280
            else:
                reg, off, hstep = (vWB0 if s_ == 5 else vWB1), q*2048, 512
            return [f"ds_read_b64_tr_b16 {vr(B+4+4*i,2)}, v{reg} offset:{off}",
                    f"ds_read_b64_tr_b16 {vr(B+6+4*i,2)}, v{reg} offset:{off+hstep}"]
        def stat_ops(buf, k):
            B = BUF[buf]
            t0, t1 = T + 2*(k & 1), T + 2*(k & 1) + 1
            return [f"v_lshlrev_b32 v{t0}, 16, v{B+k}",
                    f"v_and_b32 v{t1}, 0xffff0000, v{B+k}",
                    f"v_add_f32 v{vS}, v{vS}, v{t0}",
                    f"v_add_f32 v{vS+1}, v{vS+1}, v{t1}",
                    f"v_fma_f32 v{vS+2}, v{t0}, v{t0}, v{vS+2}",
                    f"v_fma_f32 v{vS+3}, v{t1}, v{t1}, v{vS+3}"]
        def phase(cur, nxt_q, nxt):
            B = BUF[cur]
            rds = []
            if nxt_q is not None:
                rds = rd_x(nxt_q, nxt)
                for i in range(nsl): rds += rd_w(nxt_q, nxt, i)
            nr = len(rds)
            split = [rds[:(nr+1)//2], rds[(nr+1)//2:]] + [[]]*(nsl-2)
            st = []
            if not cfg.get("nostat"):
                for k in ((0, 1) if ch == 0 else (2, 3)): st += stat_ops(cur, k)
            per = (len(st) + nsl - 1)//nsl
            for i, (s_, ty) in enumerate(types):
                acc = vr(ACC+16*i, 16)
                A(f"v_mfma_f32_32x32x16_bf16 {acc}, {vr(B+4+4*i,4)}, {vr(B,4)}, {acc}")
                for l in split[i]: A(l)
                for l in st[i*per:(i+1)*per]: A(l)
        ool = []
        def colsum(buf, lab, pos):
            if cfg.get("nocs"): return
            A(f"s_cmp_eq_u32 s{sR}, {pos}")
            A(f"s_cbranch_scc1 K1_CS_{tag}_{lab}")
            A.label(f"K1_CSR_{tag}_{lab}")
            ool.append((buf, lab))
        def emit_ool():
            for (buf, lab) in ool:
                B = BUF[buf]
                A.label(f"K1_CS_{tag}_{lab}")
                for i in range(nsl):
                    A(f"v_mfma_f32_16x16x32_bf16 {vr(CSA+4*i,4)}, {vr(SEL,4)}, {vr(B+4+4*i,4)}, {vr(CSA+4*i,4)}")
                A(f"s_branch K1_CSR_{tag}_{lab}")
        stamp(1)
        A(".p2align 6")
        A.label(f"K1_LOOP_{tag}")
        A("s_barrier")
        phase(1, 0, 0); colsum(1, "a", 0)
        A("s_waitcnt lgkmcnt(0)"); phase(0, 1, 1); colsum(0, "b", 1)
        A("s_waitcnt lgkmcnt(0)"); phase(1, 2, 0); colsum(1, "c", 2)
        A("s_waitcnt lgkmcnt(0)"); phase(0, 3, 1); colsum(0, "d", 3)
        A(f"""
        s_add_u32 s{sRingI}, s{sRingI}, 1
        s_cmp_eq_u32 s{sRingI}, 3
        s_mov_b32 s{sDelta}, {RING}
        s_cselect_b32 s{sDelta}, {(-2*RING) & 0xffffffff}, s{sDelta}
        s_cselect_b32 s{sRingI}, 0, s{sRingI}
        """)
        for q in range(4): A(f"v_add_u32 v{vXa+q}, s{sDelta}, v{vXa+q}")
        A(f"v_add_u32 v{vWa}, s{sDelta}, v{vWa}")
        if newl and ch == 1:
            A(f"v_add_u32 v{vWB0}, s{sDelta}, v{vWB0}")
            A(f"v_add_u32 v{vWB1}, s{sDelta}, v{vWB1}")
        A(f"""
        s_add_u32 s{sC}, s{sC}, 1
        s_cmp_lt_u32 s{sC}, 10
        s_waitcnt lgkmcnt(0)
        s_cbranch_scc1 K1_LOOP_{tag}
        """)
        phase(1, None, None); colsum(1, "e", 0)
        stamp(2)
        A(f"""
        v_lshlrev_b32 v{T}, 4, v{vLane}
        s_lshl_b32 s58, s{sR}, 2
        s_add_u32 s58, s58, {L_CSP}
        v_add_u32 v{T}, s58, v{T}
        s_nop 6
        s_mov_b64 exec, 0xffff
        """)
        for i, (sl, ty) in enumerate(types):
            A(f"ds_write_b32 v{T}, v{CSA+4*i} offset:{sl*512}")
            A(f"ds_write_b32 v{T}, v{CSA+4*i+1} offset:{sl*512 + 256}")
        A("s_mov_b64 exec, -1")
        A(f"""
        v_add_f32 v{vS}, v{vS}, v{vS+1}
        v_add_f32 v{vS+2}, v{vS+2}, v{vS+3}
        v_mov_b32 v{T}, v{vS}
        v_mov_b32 v{T+1}, v{vS+2}
        s_nop 1
        v_permlane32_swap_b32 v{T}, v{vS}
        v_permlane32_swap_b32 v{T+1}, v{vS+2}
        s_lshl_b32 s58, s{sR}, 8
        s_add_u32 s58, s58, {L_ST + (1024 if ch == 1 else 0)}
        v_add_f32 v{vS}, v{vS}, v{T}
        v_add_f32 v{vS+1}, v{vS+2}, v{T+1}
        v_lshl_add_u32 v{T}, v{vM}, 3, s58
        s_nop 0
        """)
        A.lines.pop()
        A(f"""
        v_mov_b32 v{T+2}, v{vS}
        v_mov_b32 v{T+3}, v{vS+1}
        ds_write_b64 v{T}, {vr(T+2,2)}
        """)
        A(f"""
        s_and_b32 s{SRD_WS+1}, s{SRD_WS+1}, 0xffff
        s_mov_b32 s{SRD_WS+2}, {WS_SIZE}
        s_mov_b32 s{SRD_WS+3}, 0x00020000
        s_waitcnt lgkmcnt(0)
        s_barrier
        """)
        stamp(4)
        has_T = any(ty == "T" for _, ty in types)
        vNmu, vSd, vRs = vS, vS+1, vS+2
        BA = BUF[0]
        AA = BUF[0] + 4
        CP = BUF[1]
        B1r = BUF[0] + 12
        A(f"""
        s_lshl_b32 s58, s{sR}, 8
        s_add_u32 s58, s58, {L_ST}
        v_lshl_add_u32 v{T}, v{vM}, 3, s58
        ds_read_b64 {vr(T+4,2)}, v{T}
        ds_read_b64 {vr(T+6,2)}, v{T} offset:1024
        v_lshlrev_b32 v{T+1}, 4, v{vM}
        v_add_u32 v{T+1}, {L_CSP}, v{T+1}
        v_lshlrev_b32 v{T+2}, 2, v{vM}
        v_add_u32 v{T+2}, {L_B1}, v{T+2}
        """)
        for i, (sl, ty) in enumerate(types):
            A(f"ds_read_b128 {vr(CP+4*i,4)}, v{T+1} offset:{sl*512}")
            if ty == "H": A(f"ds_read_b32 v{B1r+i}, v{T+2} offset:{sl*128}")
            else: A(f"v_mov_b32 v{B1r+i}, 0")
        A(f"""
        v_cmp_eq_u32 vcc, 1, v{vHh}
        s_waitcnt lgkmcnt(0)
        v_add_f32 v{vNmu}, v{T+4}, v{T+6}
        v_add_f32 v{vSd}, v{T+5}, v{T+7}
        v_mul_f32 v{vNmu}, {hex(f2u(-1.0/640))}, v{vNmu}          ; -mu
        v_mul_f32 v{vSd}, {hex(f2u(1.0/640))}, v{vSd}
        v_fma_f32 v{vSd}, -v{vNmu}, v{vNmu}, v{vSd}               ; var
        v_max_f32 v{vSd}, 0, v{vSd}
        v_add_f32 v{vSd}, {hex(f2u(1e-5))}, v{vSd}
        v_rsq_f32 v{vRs}, v{vSd}
        s_nop 0
        v_mul_f32 v{vSd}, v{vSd}, v{vRs}                          ; sd
        v_cvt_pk_bf16_f32 v{BA}, v{vNmu}, v{vNmu}
        v_and_b32 v{T}, 0xffff0000, v{BA}
        v_sub_f32 v{T}, v{vNmu}, v{T}              ; nmu_lo
        v_cvt_pk_bf16_f32 v{BA+1}, v{T}, v{vSd}
        v_and_b32 v{T}, 0xffff0000, v{BA+1}
        v_sub_f32 v{T}, v{vSd}, v{T}               ; sd_lo
        v_cvt_pk_bf16_f32 v{T}, v{T}, 0
        v_cndmask_b32 v{BA}, v{BA}, v{T}, vcc
        v_cndmask_b32 v{BA+1}, v{BA+1}, 0, vcc
        """)
        A.lines[-1] = f"    v_cndmask_b32_e64 v{BA+1}, v{BA+1}, 0, vcc"
        for i, (sl, ty) in enumerate(types):
            c = CP + 4*i
            a0 = AA + 2*i
            A(f"v_add_f32 v{c}, v{c}, v{c+1}")
            A(f"v_add_f32 v{c+2}, v{c+2}, v{c+3}")
            A(f"v_add_f32 v{c}, v{c}, v{c+2}")
            A(f"v_cvt_pk_bf16_f32 v{c+1}, v{c}, v{c}")
            A(f"v_and_b32 v{c+2}, 0xffff0000, v{c+1}")
            A(f"v_sub_f32 v{c+2}, v{c}, v{c+2}")
            A(f"v_cvt_pk_bf16_f32 v{a0}, v{c}, v{c+2}")
            A(f"v_and_b32 v{c+1}, 0xffff, v{c+1}")
            A(f"v_lshl_or_b32 v{a0+1}, v{B1r+i}, 16, v{c+1}")
            A(f"v_cndmask_b32 v{a0}, v{a0}, v{B1r+i}, vcc")
            A(f"v_cndmask_b32_e64 v{a0+1}, v{a0+1}, 0, vcc")
        A("s_nop 1")
        for i, (sl, ty) in enumerate(types):
            acc = vr(ACC+16*i, 16)
            A(f"v_mfma_f32_32x32x8_bf16 {acc}, {vr(AA+2*i,2)}, {vr(BA,2)}, {acc}")
        PK = T
        if has_T:
            vA, vBq, vV = 6, 7, 8
            A(f"""
            s_lshl_b32 s58, s{sR}, 5
            v_add_u32 v9, s58, v{vM}
            v_mul_u32_u24 v{vA}, 40, v9
            v_mul_u32_u24 v{vV}, {VROW}, v9
            v_mul_u32_u24 v9, 5088, v{vHh}
            v_add_u32 v{vBq}, v{vA}, v9
            v_lshl_add_u32 v{vA}, v{vHh}, 3, v{vA}
            v_lshl_add_u32 v{vV}, v{vHh}, 3, v{vV}
            s_cmp_lt_u32 s{sCg}, 4
            s_cselect_b32 s60, {hex(f2u(C_Q))}, 1.0
            v_mul_f32 v{T+8}, s60, v{vRs}
            """)
        if ch == 1:
            A(f"""
            s_cmp_lg_u32 s{sCg}, 0
            s_cbranch_scc1 K1_NRS_{tag}
            v_mul_f32 v{T+9}, v{vRs}, v{vRs}
            s_lshl_b32 s58, s{sTT}, 7
            s_add_u32 s58, s58, {WS_RS2}
            v_lshlrev_b32 v{T+10}, 2, v{vM}
            s_mov_b32 exec_hi, 0
            buffer_store_dword v{T+9}, v{T+10}, s[{SRD_WS}:{SRD_WS+3}], s58 offen
            s_mov_b32 exec_hi, -1
            """)
            A.label(f"K1_NRS_{tag}")
        A("s_nop 7")
        A("s_nop 3")
        for i, (s, ty) in enumerate(types):
            acc = ACC + 16*i
            if ty == "T":
                for r in range(16):
                    A(f"v_mul_f32 v{acc+r}, v{acc+r}, v{T+8}")
                for j in range(8):
                    A(f"v_cvt_pk_bf16_f32 v{PK+j}, v{acc+2*j}, v{acc+2*j+1}")
                A(f"s_cmp_ge_u32 s{sCg}, 8")
                A(f"s_cbranch_scc1 K1_SV_{tag}_{i}")
                for g in range(4):
                    Z0 = 8*s + 2*g
                    hl, q0 = Z0 // 5, Z0 % 5
                    A(f"ds_write_b64 v{vA if q0 < 4 else vBq}, {vr(PK+2*g,2)} offset:{hl*5120 + q0*8}")
                A(f"s_branch K1_SE_{tag}_{i}")
                A.label(f"K1_SV_{tag}_{i}")
                for g in range(4):
                    A(f"ds_write_b64 v{vV}, {vr(PK+2*g,2)} offset:{(8*s + 2*g)*8}")
                A.label(f"K1_SE_{tag}_{i}")
            else:
                PH = BUF[1] + 8*(i & 1)
                for r in range(16):
                    A(f"v_max_f32 v{acc+r}, 0, v{acc+r}")
                for r in range(16):
                    A(f"v_mul_f32 v{acc+r}, v{acc+r}, v{acc+r}")
                for j in range(8):
                    A(f"v_cvt_pk_bf16_f32 v{PH+j}, v{acc+2*j}, v{acc+2*j+1}")
                A(f"""
                s_mul_i32 s58, s{sTT}, 96
                s_lshr_b32 s59, s{sCol+s}, 5             ; 2*ht
                s_add_u32 s58, s58, s59
                s_lshl_b32 s58, s58, 10
                s_add_u32 s58, s58, {WS_H}
                buffer_store_dwordx4 {vr(PH,4)}, v{vL16}, s[{SRD_WS}:{SRD_WS+3}], s58 offen
                buffer_store_dwordx4 {vr(PH+4,4)}, v{vL16}, s[{SRD_WS}:{SRD_WS+3}], s58 offen offset:1024
                """)
        if has_T:
            if not cfg.get("st2"): stamp(5)
            A("s_waitcnt lgkmcnt(0)")
            A("s_barrier")
            if not cfg.get("st2"): stamp(6)
            A(f"s_branch K1_COPYOUT")
        else:
            stamp(3)
            A("s_branch K1_FIN")
        emit_ool()

    gen_path("CH0A", 0, [(0, "T"), (1, "T"), (2, "T"), (3, "T")])
    gen_path("CH0B", 0, [(0, "H"), (1, "H"), (2, "H")])
    A.label("K1_CH1")
    A(f"s_setprio {cfg.get('prio1', 1)}")
    A(f"s_cmp_ge_u32 s{sCg}, 12")
    A("s_cbranch_scc1 K1_CH1B")
    gen_path("CH1A", 1, [(4, "T"), (5, "H"), (6, "H")])
    gen_path("CH1B", 1, [(4, "H"), (5, "H"), (6, "H")])

    A.label("K1_COPYOUT")
    D0 = 24
    A(f"s_cmp_ge_u32 s{sCg}, 8")
    A("s_cbranch_scc1 K1_COV")
    A(f"""
    s_mul_i32 s58, s{sW}, 5120
    v_add_u32 v5, s58, v{vL16}
    """)
    for j in range(5):
        A(f"ds_read_b128 {vr(D0+4*j,4)}, v5 offset:{1024*j}")
    A(f"""
    s_lshl_b32 s58, s{sCg}, 3
    s_add_u32 s58, s58, s{sW}
    s_cmp_ge_u32 s{sCg}, 4
    s_cbranch_scc1 K1_COK
    s_mul_i32 s58, s58, 81920
    s_mul_i32 s59, s{sRb}, 5120
    s_add_u32 s58, s58, s59
    s_add_u32 s58, s58, {WS_Q}
    s_waitcnt lgkmcnt(0)
    """)
    for j in range(5):
        if j == 4:
            A("s_add_u32 s58, s58, 4096")
            A(f"buffer_store_dwordx4 {vr(D0+4*j,4)}, v{vL16}, s[{SRD_WS}:{SRD_WS+3}], s58 offen")
        else:
            A(f"buffer_store_dwordx4 {vr(D0+4*j,4)}, v{vL16}, s[{SRD_WS}:{SRD_WS+3}], s58 offen offset:{1024*j}")
    stamp(3)
    A("s_branch K1_FIN")
    A.label("K1_COK")
    A(f"""
    s_sub_u32 s58, s58, 32
    s_mul_i32 s58, s58, 163840
    s_mul_i32 s59, s{sRb}, 10240
    s_add_u32 s58, s58, s59
    s_add_u32 s58, s58, {WS_KV}
    s_mov_b32 s61, 52429
    """)
    for j in range(5):
        A(f"""
        v_add_u32 v6, {1024*j}, v{vL16}
        v_lshrrev_b32 v7, 8, v6
        v_mul_lo_u32 v7, v7, s61
        v_lshrrev_b32 v7, 18, v7
        v_mul_u32_u24 v7, 1280, v7
        v_add_u32 v{44+j}, v6, v7
        """)
    A("s_waitcnt lgkmcnt(0)")
    for j in range(5):
        A(f"buffer_store_dwordx4 {vr(D0+4*j,4)}, v{44+j}, s[{SRD_WS}:{SRD_WS+3}], s58 offen")
    stamp(3)
    A("s_branch K1_FIN")
    A.label("K1_COV")
    A(f"""
    v_lshrrev_b32 v5, 4, v{vLane}           ; G
    v_and_b32 v6, 1, v5                     ; h
    v_lshrrev_b32 v7, 1, v5                 ; G>>1
    v_bfe_u32 v8, v{vLane}, 2, 2            ; r4
    v_lshl_add_u32 v8, v6, 2, v8            ; 4h + r4
    s_lshl_b32 s58, s{sW}, 4                ; 32tt + 16t = 16w
    v_add_u32 v8, s58, v8                   ; row (a=0)
    v_mul_u32_u24 v8, {VROW}, v8
    v_and_b32 v9, 3, v{vLane}
    v_lshl_add_u32 v8, v9, 3, v8            ; + c4*8
    v_lshl_add_u32 v8, v7, 5, v8            ; + (G>>1)*32 bytes
    """)
    for u in range(5):
        A(f"ds_read_b64_tr_b16 {vr(D0+4*u,2)}, v8 offset:{64*u}")
        A(f"ds_read_b64_tr_b16 {vr(D0+4*u+2,2)}, v8 offset:{64*u + 8*VROW}")
    A(f"""
    v_and_b32 v9, 15, v{vLane}
    v_lshl_add_u32 v9, v7, 4, v9
    v_mul_u32_u24 v6, 320, v6               ; h*320
    s_mov_b32 s61, 52429
    s_mov_b32 s62, 163840
    """)
    for u in range(5):
        A(f"""
        v_add_u32 v5, {32*u}, v9
        v_mul_lo_u32 v7, v5, s61
        v_lshrrev_b32 v7, 20, v7            ; hl
        v_mul_u32_u24 v8, 20, v7
        v_sub_u32 v5, v5, v8                ; d
        v_mul_lo_u32 v7, v7, s62
        v_lshl_add_u32 v5, v5, 4, v7
        v_add_u32 v{44+u}, v5, v6
        """)
    A(f"""
    s_sub_u32 s58, s{sCg}, 8
    s_mul_i32 s58, s58, {8*163840}
    s_lshr_b32 s59, s{sW}, 1
    s_lshl_b32 s60, s{sRb}, 2
    s_add_u32 s59, s59, s60
    s_mul_i32 s59, s59, 2560
    s_add_u32 s58, s58, s59
    s_and_b32 s59, s{sW}, 1
    s_mul_i32 s59, s59, 640
    s_add_u32 s58, s58, s59
    s_add_u32 s58, s58, {WS_KV + 1280}
    s_waitcnt lgkmcnt(0)
    """)
    for u in range(5):
        A(f"buffer_store_dwordx4 {vr(D0+4*u,4)}, v{44+u}, s[{SRD_WS}:{SRD_WS+3}], s58 offen")
    stamp(3)
    A.label("K1_FIN")
    if prof:
        A(f"""
        s_load_dwordx2 s[58:59], s[0:1], 72
        s_waitcnt lgkmcnt(0)
        s_cmp_lg_u32 s2, 0
        s_cbranch_scc1 K1_END
        s_mov_b64 exec, 1
        s_lshl_b32 s62, s{sW}, 5
        v_mov_b32 v1, s62
        s_sub_u32 s74, s74, s72
        s_sub_u32 s76, s76, s72
        s_sub_u32 s78, s78, s72
        s_sub_u32 s80, s80, s72
        s_sub_u32 s82, s82, s72
        s_sub_u32 s84, s84, s72
        v_mov_b32 v2, s76
        v_mov_b32 v3, s80
        v_mov_b32 v4, s82
        v_mov_b32 v5, s84
        global_store_dwordx4 v1, v[2:5], s[58:59]
        v_mov_b32 v2, s78
        global_store_dword v1, v2, s[58:59] offset:16
        """)
    A("s_endpgm")

    vWq, vW1o, vXe, vXo, vS1, vS2, vTr = 5, 6, 7, 8, 10, 11, 12
    A.label("K1_LOADER")
    A(f"s_setprio {cfg.get('prioL', 3)}")
    A(f"""
    v_lshrrev_b32 v9, 2, v{vLane}
    v_and_b32 v13, 3, v{vLane}
    v_lshlrev_b32 v13, 4, v13
    v_mul_u32_u24 v{vWq}, 3840, v9
    v_add_u32 v{vWq}, v{vWq}, v13
    v_mul_u32_u24 v{vW1o}, 3072, v9
    v_add_u32 v{vW1o}, v{vW1o}, v13
    v_lshrrev_b32 v9, 3, v{vLane}
    v_mul_u32_u24 v{vXe}, 1280, v9
    v_lshrrev_b32 v9, 4, v{vLane}
    v_and_b32 v13, 7, v{vLane}
    v_xor_b32 v14, v13, v9
    v_lshlrev_b32 v14, 4, v14
    v_xor_b32 v9, 4, v9
    v_xor_b32 v9, v13, v9
    v_lshlrev_b32 v9, 4, v9
    v_add_u32 v{vXo}, v{vXe}, v9
    v_add_u32 v{vXe}, v{vXe}, v14
    """)
    for j in range(5):
        A(f"""
        v_add_u32 v9, {1024*j}, v{vL16}
        v_lshrrev_b32 v13, 6, v9
        v_mul_u32_u24 v13, 52429, v13
        v_lshrrev_b32 v13, 18, v13              ; row = L/320
        v_mul_u32_u24 v14, 320, v13
        v_sub_u32 v14, v9, v14
        v_mul_u32_u24 v13, 3840, v13
        v_add_u32 v{20+j}, v13, v14
        """)
    A(f"""
    v_lshrrev_b32 v9, 3, v{vLane}
    v_mul_u32_u24 v25, 3072, v9
    v_bfe_u32 v9, v{vLane}, 4, 1
    v_lshlrev_b32 v9, 2, v9
    v_and_b32 v13, 7, v{vLane}
    v_xor_b32 v9, v9, v13
    v_lshl_add_u32 v25, v9, 4, v25
    s_mov_b32 s{sRingD}, 0
    ; x soffsets
    s_lshl_b32 s58, s{sRb}, 7
    s_lshl_b32 s59, s{sR}, 5
    s_add_u32 s58, s58, s59
    s_mul_i32 s58, s58, 1280
    """)
    for i in range(4): A(f"s_add_u32 s{sSo+i}, s58, {i*8*1280}")
    A(f"""
    s_lshr_b32 s58, s2, 3
    s_lshr_b32 s59, s58, 3
    s_and_b32 s58, s58, 7
    s_mul_i32 s59, s59, {cfg.get("rotm", 3)}
    s_add_u32 s58, s58, s59
    s_cmp_ge_u32 s58, 10
    s_cselect_b32 s59, 10, 0
    s_sub_u32 s70, s58, s59
    s_cmp_ge_u32 s70, 10
    s_cselect_b32 s59, 10, 0
    s_sub_u32 s70, s70, s59
    """)
    if cfg.get("norot"): A("s_mov_b32 s70, 0")
    A("s_lshl_b32 s59, s70, 7")
    for i in range(4): A(f"s_add_u32 s{sSo+i}, s{sSo+i}, s59")
    A(f"""
    s_mul_i32 s58, s{sR}, {16*3840}
    s_mul_i32 s59, s{sR}, {16*3072}
    s_cmp_ge_u32 s{sCg}, 12
    s_cselect_b32 s58, s59, s58
    """)
    for s in range(5): A(f"s_add_u32 s{sSo+4+s}, s58, s{sCol+s}")
    for s in (5, 6): A(f"s_add_u32 s{sSo+4+s}, s59, s{sCol+s}")
    A(f"""
    s_mov_b32 s58, {64*3840}
    s_cmp_ge_u32 s{sCg}, 12
    s_cselect_b32 s58, {64*3072}, s58
    s_mul_i32 s58, s58, s70
    s_mul_i32 s59, s70, {64*3072}
    """)
    for s in range(5): A(f"s_add_u32 s{sSo+4+s}, s{sSo+4+s}, s58")
    for s in (5, 6): A(f"s_add_u32 s{sSo+4+s}, s{sSo+4+s}, s59")
    A(f"""
    s_cmp_ge_u32 s{sCg}, 12
    s_cbranch_scc1 K1_LOLD
    s_add_u32 s{sSo+10}, s{sSo+9}, {8*3072}
    """)
    A.label("K1_LOLD")
    A(f"""
    s_waitcnt lgkmcnt(0)
    s_mov_b32 s{SRD_X}, s4
    s_and_b32 s{SRD_X+1}, s5, 0xffff
    s_mov_b32 s{SRD_X+2}, 2621440
    s_mov_b32 s{SRD_X+3}, 0x00020000
    s_mov_b32 s{SRD_W1}, s64
    s_and_b32 s{SRD_W1+1}, s65, 0xffff
    s_mov_b32 s{SRD_W1+2}, 1966080
    s_mov_b32 s{SRD_W1+3}, 0x00020000
    s_and_b32 s{SRD_WS+1}, s{SRD_WS+1}, 0xffff
    s_mov_b32 s{SRD_WS+2}, {WS_SIZE}
    s_mov_b32 s{SRD_WS+3}, 0x00020000
    s_cmp_ge_u32 s{sCg}, 12
    s_cselect_b32 s{SRD_WQ}, s64, s6
    s_cselect_b32 s{SRD_WQ+1}, s65, s7
    s_and_b32 s{SRD_WQ+1}, s{SRD_WQ+1}, 0xffff
    s_cmp_ge_u32 s{sCg}, 12
    s_mov_b32 s{SRD_WQ+2}, 2457600
    s_cselect_b32 s{SRD_WQ+2}, 1966080, s{SRD_WQ+2}
    s_mov_b32 s{SRD_WQ+3}, 0x00020000
    s_mov_b32 s68, {64*3840}
    s_cselect_b32 s68, {64*3072}, s68
    s_cselect_b32 s69, 0, 1
    s_cselect_b64 vcc, -1, 0
    v_cndmask_b32 v15, v{vWq}, v{vW1o}, vcc
    """)
    vWa5 = 15
    def dma_groups(new):
        G = []
        head = f"""
        s_add_u32 s70, s70, 1
        s_cmp_eq_u32 s70, 10
        s_cselect_b32 s70, 0, s70
        s_mov_b32 s71, 128
        s_cselect_b32 s71, {(-9*128) & 0xffffffff}, s71
        s_mul_i32 s86, s68, -9
        s_cselect_b32 s86, s86, s68
        s_mov_b32 s87, {64*3072}
        s_cselect_b32 s87, {(-9*64*3072) & 0xffffffff}, s87
        s_lshl_b32 s58, s{sR}, 12
        s_add_u32 s58, s58, s{sRingD}
        """.strip().split("\n")
        G.append(head)
        for i in range(4):
            mid = "s_nop 0" if i == 0 else f"s_add_u32 s{sSo+i-1}, s{sSo+i-1}, s71"
            G.append([f"s_add_u32 m0, s58, {i*1024}", mid,
                      f"buffer_load_dwordx4 v{vXe if i % 2 == 0 else vXo}, s[{SRD_X}:{SRD_X+3}], s{sSo+i} offen lds"]
                     + ([f"s_add_u32 s{sSo+i}, s{sSo+i}, s71"] if i == 3 else []))
        if new:
            pre = [f"s_mul_i32 s58, s{sR}, 5120", f"s_add_u32 s58, s58, s{sRingD}", f"s_lshl_b32 s59, s{sR}, 11", f"s_add_u32 s59, s59, s{sRingD}"]
            for j in range(5):
                g = (pre if j == 0 else []) + [f"s_add_u32 m0, s58, {16384 + j*1024}", "s_nop 0",
                     f"buffer_load_dwordx4 v{20+j}, s[{SRD_WQ}:{SRD_WQ+3}], s{sSo+4} offen lds"]
                if j == 4: g.append(f"s_add_u32 s{sSo+4}, s{sSo+4}, s86")
                G.append(g)
            for j in range(2):
                G.append([f"s_add_u32 m0, s59, {36864 + j*1024}", "s_nop 0",
                          f"buffer_load_dwordx4 v25, s[{SRD_W1}:{SRD_W1+3}], s{sSo+9+j} offen lds",
                          f"s_add_u32 s{sSo+9+j}, s{sSo+9+j}, s87"])
        else:
            pre = [f"s_lshl_b32 s58, s{sR}, 10", f"s_add_u32 s58, s58, s{sRingD}"]
            for sl in range(7):
                so = sSo + 4 + sl
                g = (pre if sl == 0 else []) + [f"s_add_u32 m0, s58, {16384 + sl*4096}", "s_nop 0"]
                if sl < 5:
                    g += [f"buffer_load_dwordx4 v{vWa5}, s[{SRD_WQ}:{SRD_WQ+3}], s{so} offen lds", f"s_add_u32 s{so}, s{so}, s86"]
                else:
                    g += [f"buffer_load_dwordx4 v{vW1o}, s[{SRD_W1}:{SRD_W1+3}], s{so} offen lds", f"s_add_u32 s{so}, s{so}, s87"]
                G.append(g)
        G[-1] = G[-1] + [f"s_add_u32 s{sRingD}, s{sRingD}, {RING}", f"s_cmp_eq_u32 s{sRingD}, {3*RING}", f"s_cselect_b32 s{sRingD}, 0, s{sRingD}"]
        return G
    def stat_items():
        it = [[f"ds_read_b128 {vr(48+4*q,4)}, v{40+q}" for q in range(4)]]
        for q in range(4):
            for k in range(4):
                x = 48 + 4*q + k
                t0, t1 = 64 + 2*(k & 1), 65 + 2*(k & 1)
                g = []
                if k == 0: g.append(f"s_waitcnt lgkmcnt({3-q})")
                g += [f"v_lshlrev_b32 v{t0}, 16, v{x}", f"v_and_b32 v{t1}, 0xffff0000, v{x}",
                      f"v_add_f32 v44, v44, v{t0}", f"v_add_f32 v45, v45, v{t1}",
                      f"v_fma_f32 v46, v{t0}, v{t0}, v46", f"v_fma_f32 v47, v{t1}, v{t1}, v47"]
                it.append(g)
        return it
    def issue_dma(tag, with_stats=False):
        A(f"s_cmp_ge_u32 s{sCg}, 12")
        A(f"s_cbranch_scc1 K1_DO_{tag}")
        for new in (True, False):
            G = dma_groups(new)
            S_ = stat_items() if with_stats else []
            if S_:
                for l in S_[0]: A(l)
                S_ = S_[1:]
            nG = len(G)
            k = 0
            for gi, g in enumerate(G):
                for l in g: A(l)
                want = (len(S_) * (gi + 1)) // nG
                while k < want:
                    for l in S_[k]: A(l)
                    k += 1
            if new:
                A(f"s_branch K1_DE_{tag}")
                A.label(f"K1_DO_{tag}")
        A.label(f"K1_DE_{tag}")
    issue_dma("p0"); issue_dma("p1")
    A(f"""
    """)
    A(f"s_cmp_eq_u32 s{sR}, 0")
    A(f"s_cselect_b32 s58, s{sCol+0}, s{sCol+2}")
    A(f"s_cselect_b32 s59, s{sCol+1}, s{sCol+3}")
    A(f"s_cmp_eq_u32 s{sR}, 2")
    A(f"s_cselect_b32 s58, s{sCol+4}, s58")
    A(f"s_cselect_b32 s59, s{sCol+5}, s59")
    A(f"s_cmp_eq_u32 s{sR}, 3")
    A(f"s_cselect_b32 s58, s{sCol+6}, s58")
    A(f"s_cselect_b32 s59, s{sCol+6}, s59")
    A(f"""
    v_mov_b32 v9, s58
    v_mov_b32 v13, s59
    v_cmp_eq_u32 vcc, 1, v{vHh}
    s_nop 1
    v_cndmask_b32 v9, v9, v13, vcc
    v_lshl_add_u32 v9, v{vM}, 1, v9
    v_min_u32 v9, 3070, v9
    global_load_ushort v16, v9, s[66:67]
    """)
    A(f"""
    v_lshrrev_b32 v9, 2, v{vLane}
    v_bfe_u32 v13, v9, 2, 1
    v_lshrrev_b32 v14, 3, v9
    v_and_b32 v9, 3, v9
    v_lshl_add_u32 v{vS1}, v13, 3, v9
    v_lshl_add_u32 v{vS1}, v14, 2, v{vS1}
    v_mul_u32_u24 v{vS1}, 1280, v{vS1}
    v_lshl_add_u32 v{vS2}, v14, 1, v13
    v_mul_u32_u24 v{vS2}, 20, v{vS2}
    v_add_u32 v{vS2}, v{vS2}, v9
    v_mul_u32_u24 v{vS2}, 1280, v{vS2}
    v_and_b32 v9, 3, v{vLane}
    v_lshlrev_b32 v9, 4, v9
    v_add_u32 v{vS1}, v{vS1}, v9
    v_add_u32 v{vS2}, v{vS2}, v9
    v_lshrrev_b32 v9, 5, v{vLane}
    v_lshlrev_b32 v9, 9, v9
    v_bfe_u32 v13, v{vLane}, 2, 2
    v_lshl_add_u32 v9, v13, 6, v9
    v_bfe_u32 v13, v{vLane}, 4, 1
    v_lshl_add_u32 v9, v13, 5, v9
    v_and_b32 v13, 3, v{vLane}
    v_lshl_add_u32 v{vTr}, v13, 3, v9
    s_lshl_b32 s{sGw}, s2, 2
    s_add_u32 s{sGw}, s{sGw}, s{sR}
    """)
    for i in range(3):
        skip = f"K1_SIDE_SKIP{i}"
        A(f"""
        s_add_u32 s58, s{sGw}, {1024*i}
        s_mul_i32 s59, s{sR}, 3072
        s_add_u32 m0, s59, {L_SIDE + 1024*i}
        s_cmp_ge_u32 s58, 1920
        s_cbranch_scc1 K1_SIDE_WO{i}
        s_mul_i32 s59, s58, 43691
        s_lshr_b32 s59, s59, 22
        s_mul_i32 s4, s59, 96
        s_sub_u32 s4, s58, s4
        s_mul_i32 s4, s4, {16*1280}
        s_lshl_b32 s59, s59, 6
        s_add_u32 s4, s4, s59
        s_mov_b32 s{SRD_T}, s62
        s_and_b32 s{SRD_T+1}, s63, 0xffff
        s_mov_b32 s{SRD_T+2}, 1966080
        s_mov_b32 s{SRD_T+3}, 0x00020000
        buffer_load_dwordx4 v{vS1}, s[{SRD_T}:{SRD_T+3}], s4 offen lds
        s_branch {skip}
        """)
        A.label(f"K1_SIDE_WO{i}")
        A(f"""
        s_sub_u32 s58, s58, 1920
        s_mul_i32 s59, s58, 52429
        s_lshr_b32 s59, s59, 21
        s_mul_i32 s4, s59, 40
        s_sub_u32 s4, s58, s4
        s_mul_i32 s5, s4, 52429
        s_lshr_b32 s5, s5, 18
        s_mul_i32 s6, s5, 5
        s_sub_u32 s6, s4, s6
        s_lshl_b32 s59, s59, 6
        s_mov_b32 s{SRD_T}, s60
        s_and_b32 s{SRD_T+1}, s61, 0xffff
        s_mov_b32 s{SRD_T+2}, 819200
        s_mov_b32 s{SRD_T+3}, 0x00020000
        s_cmp_eq_u32 s6, 4
        s_cbranch_scc1 K1_SIDE_WOT{i}
        s_lshl_b32 s5, s5, 2
        s_add_u32 s5, s5, s6
        s_mul_i32 s5, s5, {20*1280}
        s_add_u32 s5, s5, s59
        buffer_load_dwordx4 v{vS1}, s[{SRD_T}:{SRD_T+3}], s5 offen lds
        s_branch {skip}
        """)
        A.label(f"K1_SIDE_WOT{i}")
        A(f"""
        s_mul_i32 s5, s5, {80*1280}
        s_add_u32 s5, s5, {16*1280}
        s_add_u32 s5, s5, s59
        buffer_load_dwordx4 v{vS1+1}, s[{SRD_T}:{SRD_T+3}], s5 offen lds
        """)
        A.label(skip)
    A.label("K1_LLOOP")
    A(f"""
    s_cmp_eq_u32 s{sC}, 0
    s_cbranch_scc1 K1_LW0
    s_cmp_eq_u32 s{sC}, 9
    s_cbranch_scc1 K1_LW9
    s_waitcnt vmcnt(11)
    s_branch K1_LWD
    """)
    A.label("K1_LW0")
    A("s_waitcnt vmcnt(15)")
    A("s_branch K1_LWD")
    A.label("K1_LW9")
    A("s_waitcnt vmcnt(0)")
    A.label("K1_LWD")
    if prof:
        A(f"""
        s_memtime s[80:81]
        s_waitcnt lgkmcnt(0)
        s_sub_u32 s80, s80, s72
        s_mov_b32 m0, s{sC}
        s_nop 0
        v_writelane_b32 v70, s80, m0
        """)
    A(f"""
    s_waitcnt lgkmcnt(0)
    s_barrier
    """)
    if prof:
        A(f"""
        s_memtime s[80:81]
        s_waitcnt lgkmcnt(0)
        s_sub_u32 s80, s80, s72
        s_mov_b32 m0, s{sC}
        s_nop 0
        v_writelane_b32 v71, s80, m0
        """)
    A(f"""
    s_cmp_lg_u32 s{sC}, 1
    s_cbranch_scc1 K1_LNS
    """)
    A(f"""
    s_lshl_b32 s58, s{sR}, 8
    s_add_u32 s58, s58, {L_B1}
    v_lshl_add_u32 v9, v{vLane}, 2, s58
    s_cmp_eq_u32 s{sR}, 3
    s_cselect_b32 exec_hi, 0, -1
    ds_write_b32 v9, v16
    s_mov_b32 exec_hi, -1
    """)
    for i in range(3):
        A(f"""
        s_add_u32 s58, s{sGw}, {1024*i}
        s_cmp_ge_u32 s58, 2720
        s_cbranch_scc1 K1_LNS
        s_mul_i32 s59, s{sR}, 3072
        s_add_u32 s59, s59, {L_SIDE + 1024*i}
        v_add_u32 v9, s59, v{vTr}
        ds_read_b64_tr_b16 v[28:29], v9
        ds_read_b64_tr_b16 v[30:31], v9 offset:256
        s_lshl_b32 s58, s58, 10
        s_add_u32 s58, s58, {WS_W2F}
        s_waitcnt lgkmcnt(0)
        buffer_store_dwordx4 v[28:31], v{vL16}, s[{SRD_WS}:{SRD_WS+3}], s58 offen
        s_nop 1
        """)
    A.label("K1_LNS")
    A(f"""
    s_cmp_ge_u32 s{sC}, 8
    s_cbranch_scc1 K1_LND
    """)
    issue_dma("l", with_stats=False)
    A.label("K1_LND")
    if prof:
        A(f"""
        s_memtime s[80:81]
        s_waitcnt lgkmcnt(0)
        s_sub_u32 s80, s80, s72
        s_mov_b32 m0, s{sC}
        s_nop 0
        v_writelane_b32 v72, s80, m0
        """)
    A(f"""
    s_add_u32 s{sC}, s{sC}, 1
    s_cmp_lt_u32 s{sC}, 10
    s_cbranch_scc1 K1_LLOOP
    """)
    if prof:
        A(f"""
        s_load_dwordx2 s[58:59], s[0:1], 72
        s_waitcnt lgkmcnt(0)
        s_cmp_lg_u32 s2, 0
        s_cbranch_scc1 K1_END
        s_cmp_lg_u32 s{sW}, 8
        s_cbranch_scc1 K1_END
        v_lshlrev_b32 v1, 2, v{vLane}
        s_mov_b64 exec, 0x3ff
        global_store_dword v1, v70, s[58:59] offset:256
        global_store_dword v1, v71, s[58:59] offset:296
        global_store_dword v1, v72, s[58:59] offset:336
        """)
    A.label("K1_END")
    A("s_endpgm")
    kernel_footer(A, name, 168, 96)
```

```python
from asmlib import *
from gen_k2 import WS_Q, WS_KV, WS_H, WS_O, WS_W2F, WS_WOF, WS_PART, WS_SIZE, f2u


def gen_k2b(A, name="k2b_kernel", cfg=None):
    cfg = cfg or {}
    kernel_header(A, name)
    ACC0, ACC1 = 16, 32
    NST = 4
    HB, WB, XB = 48, 64, 80
    A(f"""
    s_cmp_ge_u32 s2, 256
    s_cbranch_scc1 K2B_END
    s_load_dwordx2 s[4:5], s[0:1], 80
    v_and_b32 v1, 63, v0
    v_lshrrev_b32 v2, 6, v0
    v_lshlrev_b32 v3, 4, v1
    v_readfirstlane_b32 s14, v2
    s_lshr_b32 s12, s2, 2            ; tt
    s_and_b32 s13, s2, 3             ; cg
    s_waitcnt lgkmcnt(0)
    s_mov_b32 s8, s4
    s_and_b32 s9, s5, 0xffff
    s_mov_b32 s10, {WS_SIZE}
    s_mov_b32 s11, 0x00020000
    s_mul_i32 s16, s12, {96*1024}
    s_add_u32 s16, s16, {WS_H}
    s_mul_i32 s17, s13, 5
    s_add_u32 s18, s17, 4
    s_add_u32 s17, s17, s14
    s_mul_i32 s17, s17, {96*1024}
    s_add_u32 s17, s17, {WS_W2F}
    s_mul_i32 s18, s18, {96*1024}
    s_add_u32 s18, s18, {WS_W2F}
    s_mul_i32 s19, s14, 24
    """)
    for r in range(32): A(f"v_mov_b32 v{16+r}, 0")
    A(f"""
    v_and_b32 v4, 31, v1
    v_lshlrev_b32 v4, 2, v4
    s_lshl_b32 s25, s12, 7
    s_add_u32 s25, s25, 0x12F0000
    buffer_load_dword v5, v4, s[8:11], s25 offen
    """)
    def body(extra, tag):
        A.label(f"K2B_L{tag}")
        for st in range(NST):
            nxt = (st + NST - 1) % NST
            A(f"buffer_load_dwordx4 {vr(HB+4*nxt,4)}, v3, s[8:11], s20 offen")
            A(f"buffer_load_dwordx4 {vr(WB+4*nxt,4)}, v3, s[8:11], s21 offen")
            A(f"buffer_load_dwordx4 {vr(XB+4*nxt,4)}, v3, s[8:11], s22 offen")
            A("s_add_u32 s20, s20, 1024"); A("s_add_u32 s21, s21, 1024"); A("s_add_u32 s22, s22, 1024")
            A(f"s_waitcnt vmcnt({3*(NST-1)})")
            A(f"v_mfma_f32_32x32x16_bf16 {vr(ACC0,16)}, {vr(WB+4*st,4)}, {vr(HB+4*st,4)}, {vr(ACC0,16)}")
            if extra:
                A(f"v_mfma_f32_32x32x16_bf16 {vr(ACC1,16)}, {vr(XB+4*st,4)}, {vr(HB+4*st,4)}, {vr(ACC1,16)}")
        A("s_sub_u32 s23, s23, 1")
        A("s_cmp_lg_u32 s23, 0")
        A(f"s_cbranch_scc1 K2B_L{tag}")
    A("s_mov_b32 s20, s16"); A("s_mov_b32 s21, s17"); A("s_mov_b32 s22, s18")
    for st in range(NST-1):
        A(f"buffer_load_dwordx4 {vr(HB+4*st,4)}, v3, s[8:11], s20 offen")
        A(f"buffer_load_dwordx4 {vr(WB+4*st,4)}, v3, s[8:11], s21 offen")
        A(f"buffer_load_dwordx4 {vr(XB+4*st,4)}, v3, s[8:11], s22 offen")
        A("s_add_u32 s20, s20, 1024"); A("s_add_u32 s21, s21, 1024"); A("s_add_u32 s22, s22, 1024")
    A("s_mov_b32 s24, 0")
    A.label("K2B_SEG")
    A("s_mov_b32 s23, 6")
    A("s_cmp_eq_u32 s24, s14")
    A("s_cbranch_scc1 K2B_X")
    body(False, "N")
    A("s_branch K2B_SEGE")
    A.label("K2B_X")
    body(True, "X")
    A.label("K2B_SEGE")
    A(f"""
    s_add_u32 s24, s24, 1
    s_cmp_lt_u32 s24, 4
    s_cbranch_scc1 K2B_SEG
    s_nop 15
    s_nop 3
    """)
    for r in range(32): A(f"v_mul_f32 v{16+r}, v{16+r}, v5")
    A(f"""
    s_lshl_b32 s16, s2, 15
    s_lshl_b32 s17, s14, 12
    s_add_u32 s16, s16, s17
    s_add_u32 s16, s16, {WS_PART}
    """)
    for g in range(4):
        A(f"buffer_store_dwordx4 {vr(ACC0+4*g,4)}, v3, s[8:11], s16 offen offset:{1024*g}")
    A("s_add_u32 s16, s16, 16384")
    for g in range(4):
        A(f"buffer_store_dwordx4 {vr(ACC1+4*g,4)}, v3, s[8:11], s16 offen offset:{1024*g}")
    A.label("K2B_END")
    A("s_endpgm")
    kernel_footer(A, name, 96, 32)

def gen_k3(A, name="k3_kernel", cfg=None):
    cfg = cfg or {}
    kernel_header(A, name)
    ACC0, ACC1 = 16, 32
    WB = 48
    XB = 208
    OB = 4
    A(f"""
    s_cmp_ge_u32 s2, 256
    s_cbranch_scc1 K3_END
    s_load_dwordx2 s[4:5], s[0:1], 80
    s_load_dwordx2 s[24:25], s[0:1], 0       ; x
    s_load_dwordx4 s[28:31], s[0:1], 56      ; b2, out
    v_and_b32 v1, 63, v0
    v_lshrrev_b32 v2, 6, v0
    v_lshlrev_b32 v3, 4, v1
    v_readfirstlane_b32 s14, v2
    s_lshr_b32 s12, s2, 2            ; tt
    s_and_b32 s13, s2, 3             ; cg
    s_waitcnt lgkmcnt(0)
    s_mov_b32 s8, s4
    s_and_b32 s9, s5, 0xffff
    s_mov_b32 s10, {WS_SIZE}
    s_mov_b32 s11, 0x00020000
    s_mul_i32 s16, s12, {40*1024}
    s_mul_i32 s17, s14, {10*1024}
    s_add_u32 s16, s16, s17
    s_add_u32 s16, s16, {WS_O}
    s_mov_b32 m0, s17
    """)
    for i in range(10):
        A("buffer_load_dwordx4 v3, s[8:11], s16 offen lds")
        if i < 9:
            A("s_add_u32 m0, m0, 1024"); A("s_add_u32 s16, s16, 1024")
    A(f"""
    s_lshl_b32 s16, s2, 15
    s_lshl_b32 s17, s14, 12
    s_add_u32 s16, s16, s17
    s_add_u32 s16, s16, {WS_PART}
    """)
    for g in range(4):
        A(f"buffer_load_dwordx4 {vr(ACC0+4*g,4)}, v3, s[8:11], s16 offen offset:{1024*g}")
    A("s_add_u32 s16, s16, 16384")
    for g in range(4):
        A(f"buffer_load_dwordx4 {vr(ACC1+4*g,4)}, v3, s[8:11], s16 offen offset:{1024*g}")
    A(f"""
    s_mul_i32 s17, s13, 5
    s_add_u32 s18, s17, 4
    s_add_u32 s17, s17, s14
    s_mul_i32 s17, s17, {40*1024}
    s_add_u32 s17, s17, {WS_WOF}
    s_mul_i32 s18, s18, {40*1024}
    s_mul_i32 s19, s14, {10*1024}
    s_add_u32 s18, s18, s19
    s_add_u32 s18, s18, {WS_WOF}
    """)
    for i in range(10):
        if i % 4 == 0 and i > 0: A("s_add_u32 s18, s18, 4096")
        A(f"buffer_load_dwordx4 {vr(XB+4*i,4)}, v3, s[8:11], s18 offen offset:{1024*(i%4)}")
    for i in range(40):
        if i % 4 == 0 and i > 0: A("s_add_u32 s17, s17, 4096")
        A(f"buffer_load_dwordx4 {vr(WB+4*i,4)}, v3, s[8:11], s17 offen offset:{1024*(i%4)}")
    A("s_waitcnt vmcnt(58)")
    A("s_barrier")
    A("s_mul_i32 s19, s14, 10240")
    A("v_add_u32 v12, s19, v3")
    for i in range(10):
        A(f"ds_read_b128 {vr(OB+4*(i%2),4)}, v12 offset:{1024*i}")
        if i == 0: A("s_waitcnt vmcnt(40)")
        A("s_waitcnt lgkmcnt(0)")
        A(f"v_mfma_f32_32x32x16_bf16 {vr(ACC1,16)}, {vr(XB+4*i,4)}, {vr(OB+4*(i%2),4)}, {vr(ACC1,16)}")
    for i in range(40):
        A(f"ds_read_b128 {vr(OB+4*(i%2),4)}, v3 offset:{1024*i}")
        A(f"s_waitcnt vmcnt({39-i})")
        A("s_waitcnt lgkmcnt(0)")
        A(f"v_mfma_f32_32x32x16_bf16 {vr(ACC0,16)}, {vr(WB+4*i,4)}, {vr(OB+4*(i%2),4)}, {vr(ACC0,16)}")
    A(f"""
    s_nop 15
    s_lshl_b32 s19, s14, 12
    s_add_u32 s19, s19, 40960
    v_add_u32 v12, s19, v3
    """)
    for g in range(4):
        A(f"ds_write_b128 v12, {vr(ACC1+4*g,4)} offset:{1024*g}")
    A(f"""
    v_and_b32 v5, 31, v1
    v_lshrrev_b32 v6, 5, v1
    s_lshl_b32 s16, s12, 5                    ; token0
    v_add_u32 v7, s16, v5                     ; token
    v_mul_u32_u24 v7, 1280, v7
    v_lshl_add_u32 v7, v6, 3, v7              ; + h*8 bytes
    s_mul_i32 s17, s13, 320
    s_lshl_b32 s18, s14, 6
    s_add_u32 s18, s18, s17
    s_add_u32 s17, s17, 256
    s_lshl_b32 s19, s14, 4
    s_add_u32 s17, s17, s19
    v_add_u32 v8, s18, v7                     ; own: + g*16
    v_add_u32 v9, s17, v7
    v_lshlrev_b32 v10, 3, v6
    v_add_u32 v11, s17, v10                   ; b2 offsets
    v_add_u32 v10, s18, v10
    """)
    XR = 48; BR = 64
    for g in range(4):
        A(f"global_load_dwordx2 {vr(XR+2*g,2)}, v8, s[24:25] offset:{16*g}")
    A(f"global_load_dwordx2 {vr(XR+8,2)}, v9, s[24:25]")
    for g in range(4):
        A(f"global_load_dwordx2 {vr(BR+2*g,2)}, v10, s[28:29] offset:{16*g}")
    A(f"global_load_dwordx2 {vr(BR+8,2)}, v11, s[28:29]")
    A("s_waitcnt lgkmcnt(0)")
    A("s_barrier")
    A("s_lshl_b32 s19, s14, 10")
    A("s_add_u32 s19, s19, 40960")
    A("v_add_u32 v12, s19, v3")
    RB = 80
    for k in range(4):
        A(f"ds_read_b128 {vr(RB+4*k,4)}, v12 offset:{4096*k}")
    A("s_waitcnt lgkmcnt(0)")
    for i in range(4):
        A(f"v_add_f32 v{RB+i}, v{RB+i}, v{RB+4+i}")
        A(f"v_add_f32 v{RB+8+i}, v{RB+8+i}, v{RB+12+i}")
        A(f"v_add_f32 v{RB+i}, v{RB+i}, v{RB+8+i}")
    A("s_waitcnt vmcnt(0)")
    def addbf(dst, src_reg, hi):
        t = 100
        if hi: A(f"v_and_b32 v{t}, 0xffff0000, v{src_reg}")
        else:  A(f"v_lshlrev_b32 v{t}, 16, v{src_reg}")
        A(f"v_add_f32 v{dst}, v{dst}, v{t}")
    for g in range(4):
        for i in range(4):
            addbf(ACC0+4*g+i, XR+2*g+(i>>1), i & 1)
            addbf(ACC0+4*g+i, BR+2*g+(i>>1), i & 1)
    for i in range(4):
        addbf(RB+i, XR+8+(i>>1), i & 1)
        addbf(RB+i, BR+8+(i>>1), i & 1)
    PK = 104
    for g in range(4):
        A(f"v_cvt_pk_bf16_f32 v{PK+2*g}, v{ACC0+4*g}, v{ACC0+4*g+1}")
        A(f"v_cvt_pk_bf16_f32 v{PK+2*g+1}, v{ACC0+4*g+2}, v{ACC0+4*g+3}")
    A(f"v_cvt_pk_bf16_f32 v{PK+8}, v{RB}, v{RB+1}")
    A(f"v_cvt_pk_bf16_f32 v{PK+9}, v{RB+2}, v{RB+3}")
    for g in range(4):
        A(f"global_store_dwordx2 v8, {vr(PK+2*g,2)}, s[30:31] offset:{16*g}")
    A(f"global_store_dwordx2 v9, {vr(PK+8,2)}, s[30:31]")
    A.label("K3_END")
    A("s_endpgm")
    kernel_footer(A, name, 248, 40)
```

```python
import sys
from asmlib import *
import gen_k1, gen_k2, gen_k3
NAME = "parallel_sum__softmax_full_mha__dense_activation_squared_relu__prompt"
def build(mode="full", cfg=None):
    A = Asm()
    hdr = []
    if mode == "k2only":
        hdr.append("; @launch kernel=k2_kernel grid=(256,1,1) block=(512,1,1) lds=163840")
    elif mode == "k1only":
        hdr.append(f"; @launch kernel=k1_kernel grid=(256,1,1) block=(768,1,1) lds={gen_k1.K1_LDS}")
    else:
        hdr.append(f"; @launch kernel=k1_kernel grid=(256,1,1) block=(768,1,1) lds={gen_k1.K1_LDS}")
        hdr.append("; @launch kernel=k2_kernel grid=(256,1,1) block=(512,1,1) lds=163840")
        hdr.append("; @launch kernel=k2b_kernel grid=(256,1,1) block=(256,1,1) lds=0")
        hdr.append("; @launch kernel=k3_kernel grid=(256,1,1) block=(256,1,1) lds=57344")
    A.lines += hdr
    A('.amdgcn_target "amdgcn-amd-amdhsa--gfx950"')
    if mode != "k2only":
        gen_k1.gen_k1(A, "k1_kernel", cfg)
    if mode != "k1only":
        gen_k2.gen_k2(A, "k2_kernel", cfg)
    if mode not in ("k2only", "k1only"):
        gen_k3.gen_k2b(A, "k2b_kernel", cfg)
        gen_k3.gen_k3(A, "k3_kernel", cfg)
    return A.text()
if __name__ == "__main__":
    mode = sys.argv[1]; out = sys.argv[2]
    cfg = {}
    for a in sys.argv[3:]:
        k, v = a.split("=")
        cfg[k] = eval(v)
    open(out, "w").write(build(mode, cfg))
```

```python
from asmlib import *
from gen_k2 import WS_Q, WS_KV, WS_H, WS_O, WS_W2F, WS_WOF, WS_PART, WS_SIZE, f2u

C_Q = 20**-0.5 * 1.4426950408889634
RING = 45056
L_ST  = 3*RING
L_CSP = L_ST + 2048
L_B1  = L_CSP + 3584
L_SIDE= 141824
K1_LDS = L_SIDE + 12288
WS_RS2 = 0x12F0000
VROW = 328

def gen_k1(A, name="k1_kernel", cfg=None):
    cfg = cfg or {}
    prof = cfg.get("prof1", False)
    SRD_X, SRD_WQ, SRD_W1, SRD_WS, SRD_T = 8, 12, 16, 20, 24
    sRb, sCg, sW, sR = 28, 29, 30, 31
    sC = 32
    sRingD = 33
    sDelta = 34
    sRingI = 35
    sSo = 36
    sCol = 48
    sTT = 55
    sGw = 56
    sT = 58
    def stamp(i):
        if prof: A(f"s_memtime s[{72+2*i}:{73+2*i}]")

    vLane, vM, vHh, vL16 = 1, 2, 3, 4

    kernel_header(A, name)
    stamp(0)
    A(f"""
    s_cmp_ge_u32 s2, 256
    s_cbranch_scc1 K1_END
    s_load_dwordx4 s[4:7], s[0:1], 0        ; x, wqkv
    s_load_dwordx4 s[64:67], s[0:1], 32     ; w1, b1
    s_load_dwordx2 s[20:21], s[0:1], 80     ; ws
    s_load_dwordx2 s[60:61], s[0:1], 16     ; wo
    s_load_dwordx2 s[62:63], s[0:1], 48     ; w2
    v_and_b32 v{vLane}, 63, v0
    v_lshrrev_b32 v9, 6, v0
    v_and_b32 v{vM}, 31, v{vLane}
    v_readfirstlane_b32 s{sW}, v9
    v_lshrrev_b32 v{vHh}, 5, v{vLane}
    v_lshlrev_b32 v{vL16}, 4, v{vLane}
    s_and_b32 s58, s2, 7
    s_lshr_b32 s59, s2, 3
    s_and_b32 s{sRb}, s58, 1
    s_lshl_b32 s{sRb}, s{sRb}, 3
    s_and_b32 s{sCg}, s59, 7
    s_add_u32 s{sRb}, s{sRb}, s{sCg}       ; rb = 8*(x&1) + (j&7)
    s_lshr_b32 s{sCg}, s58, 1
    s_lshl_b32 s{sCg}, s{sCg}, 2
    s_lshr_b32 s59, s59, 3
    s_add_u32 s{sCg}, s{sCg}, s59          ; cg = 4*(x>>1) + (j>>3)
    """)
    if cfg.get("samedata"):
        A(f"s_mov_b32 s{sRb}, 0")
        A(f"s_mov_b32 s{sCg}, 2")
    A(f"""
    s_and_b32 s{sR}, s{sW}, 3
    s_lshl_b32 s{sTT}, s{sRb}, 2
    s_add_u32 s{sTT}, s{sTT}, s{sR}
    s_cmp_ge_u32 s{sCg}, 12
    s_cbranch_scc1 K1_COLB
    s_mul_i32 s58, s{sCg}, 320
    s_mov_b32 s{sCol+0}, s58
    s_add_u32 s{sCol+1}, s58, 64
    s_add_u32 s{sCol+2}, s58, 128
    s_add_u32 s{sCol+3}, s58, 192
    s_add_u32 s{sCol+4}, s58, 256
    s_lshl_b32 s58, s{sCg}, 7
    s_mov_b32 s{sCol+5}, s58
    s_add_u32 s{sCol+6}, s58, 64
    s_branch K1_COLD
    """)
    A.label("K1_COLB")
    A(f"""
    s_sub_u32 s58, s{sCg}, 12
    s_mul_i32 s58, s58, 384                ; 6 tiles * 64B
    s_add_u32 s58, s58, {24*64}
    s_mov_b32 s{sCol+0}, s58
    s_add_u32 s{sCol+1}, s58, 64
    s_add_u32 s{sCol+2}, s58, 128
    s_mov_b32 s{sCol+3}, 0
    s_add_u32 s{sCol+4}, s58, 192
    s_add_u32 s{sCol+5}, s58, 256
    s_add_u32 s{sCol+6}, s58, 320
    """)
    A.label("K1_COLD")
    A(f"""
    s_mov_b32 s{sC}, 0
    s_cmp_ge_u32 s{sW}, 8
    s_cbranch_scc1 K1_LOADER
    """)
    vXa = 10
    vWa = 14
    vWB0, vWB1 = 19, 9
    vS = 15
    SEL = 20
    BUF = [24, 44]
    ACC = 64
    CSA = 128
    T = 144
    A(f"""
    s_setprio {cfg.get("prio0", 1)}
    v_lshrrev_b32 v9, 1, v{vM}
    v_and_b32 v9, 7, v9
    s_lshl_b32 s58, s{sR}, 12
    v_lshlrev_b32 v5, 7, v{vM}
    v_add_u32 v5, s58, v5
    """)
    for q in range(4):
        A(f"""
        v_add_u32 v6, {2*q}, v{vHh}
        v_xor_b32 v6, v6, v9
        v_lshl_add_u32 v{vXa+q}, v6, 4, v5
        """)
    A(f"""
    v_lshrrev_b32 v9, 5, v{vLane}
    v_lshlrev_b32 v9, 9, v9
    v_bfe_u32 v5, v{vLane}, 2, 2
    v_lshl_add_u32 v9, v5, 6, v9
    v_bfe_u32 v5, v{vLane}, 4, 1
    v_lshl_add_u32 v9, v5, 5, v9
    v_and_b32 v6, 3, v{vLane}
    v_lshl_add_u32 v9, v6, 3, v9
    v_add_u32 v{vWa}, 16384, v9
    s_cmp_ge_u32 s{sCg}, 12
    s_cbranch_scc1 K1_OLDW
    v_lshrrev_b32 v7, 5, v{vLane}
    v_bfe_u32 v8, v{vLane}, 2, 2
    v_lshl_add_u32 v7, v7, 3, v8            ; 8*(G>>1) + r4
    v_lshlrev_b32 v8, 5, v5                 ; (G&1)*32
    v_lshl_add_u32 v8, v6, 3, v8            ; + c4*8
    v_mul_u32_u24 v{vWa}, 320, v7
    v_add_u32 v{vWa}, v{vWa}, v8
    v_add_u32 v{vWa}, 16384, v{vWa}
    v_lshl_add_u32 v{vWB0}, v7, 7, v8
    v_add_u32 v{vWB0}, 36864, v{vWB0}
    v_bfe_u32 v7, v{vLane}, 3, 1
    v_lshlrev_b32 v7, 6, v7
    v_xor_b32 v8, 64, v7
    v_add_u32 v9, v{vWB0}, v8
    v_add_u32 v{vWB0}, v{vWB0}, v7
    """)
    A.label("K1_OLDW")
    A(f"""
    v_and_b32 v6, 1, v{vLane}
    v_cmp_eq_u32 vcc, v5, v6
    v_mov_b32 v6, 0x3f803f80
    s_nop 0
    v_cndmask_b32 v{SEL}, 0, v6, vcc
    v_mov_b32 v{SEL+1}, v{SEL}
    v_mov_b32 v{SEL+2}, v{SEL}
    v_mov_b32 v{SEL+3}, v{SEL}
    s_mov_b32 s{sRingI}, 0
    """)
    for r in range(4): A(f"v_mov_b32 v{vS+r}, 0")
    for r in range(64): A(f"v_mov_b32 v{ACC+r}, 0")
    for r in range(16): A(f"v_mov_b32 v{CSA+r}, 0")
    for r in range(20): A(f"v_mov_b32 v{BUF[1]+r}, 0")
    A(f"""
    s_cmp_ge_u32 s{sW}, 4
    s_cbranch_scc1 K1_CH1
    s_cmp_ge_u32 s{sCg}, 12
    s_cbranch_scc1 K1_CH0B
    """)

    def gen_path(tag, ch, types):
        nsl = len(types)
        A.label(f"K1_{tag}")
        def rd_x(q, buf):
            return [f"ds_read_b128 {vr(BUF[buf],4)}, v{vXa+q}"]
        newl = tag.endswith("A")
        def rd_w(q, buf, i):
            s_ = types[i][0]
            B = BUF[buf]
            if not newl:
                reg, off, hstep = vWa, (s_*4 + q)*1024, 256
            elif s_ < 5:
                reg, off, hstep = vWa, q*5120 + s_*64, 1280
            else:
                reg, off, hstep = (vWB0 if s_ == 5 else vWB1), q*2048, 512
            return [f"ds_read_b64_tr_b16 {vr(B+4+4*i,2)}, v{reg} offset:{off}",
                    f"ds_read_b64_tr_b16 {vr(B+6+4*i,2)}, v{reg} offset:{off+hstep}"]
        def stat_ops(buf, k):
            B = BUF[buf]
            t0, t1 = T + 2*(k & 1), T + 2*(k & 1) + 1
            return [f"v_lshlrev_b32 v{t0}, 16, v{B+k}",
                    f"v_and_b32 v{t1}, 0xffff0000, v{B+k}",
                    f"v_add_f32 v{vS}, v{vS}, v{t0}",
                    f"v_add_f32 v{vS+1}, v{vS+1}, v{t1}",
                    f"v_fma_f32 v{vS+2}, v{t0}, v{t0}, v{vS+2}",
                    f"v_fma_f32 v{vS+3}, v{t1}, v{t1}, v{vS+3}"]
        def phase(cur, nxt_q, nxt):
            B = BUF[cur]
            rds = []
            if nxt_q is not None:
                rds = rd_x(nxt_q, nxt)
                for i in range(nsl): rds += rd_w(nxt_q, nxt, i)
            nr = len(rds)
            split = [rds[:(nr+1)//2], rds[(nr+1)//2:]] + [[]]*(nsl-2)
            st = []
            if not cfg.get("nostat"):
                for k in ((0, 1) if ch == 0 else (2, 3)): st += stat_ops(cur, k)
            per = (len(st) + nsl - 1)//nsl
            for i, (s_, ty) in enumerate(types):
                acc = vr(ACC+16*i, 16)
                A(f"v_mfma_f32_32x32x16_bf16 {acc}, {vr(B+4+4*i,4)}, {vr(B,4)}, {acc}")
                for l in split[i]: A(l)
                for l in st[i*per:(i+1)*per]: A(l)
        ool = []
        def colsum(buf, lab, pos):
            if cfg.get("nocs"): return
            A(f"s_cmp_eq_u32 s{sR}, {pos}")
            A(f"s_cbranch_scc1 K1_CS_{tag}_{lab}")
            A.label(f"K1_CSR_{tag}_{lab}")
            ool.append((buf, lab))
        def emit_ool():
            for (buf, lab) in ool:
                B = BUF[buf]
                A.label(f"K1_CS_{tag}_{lab}")
                for i in range(nsl):
                    A(f"v_mfma_f32_16x16x32_bf16 {vr(CSA+4*i,4)}, {vr(SEL,4)}, {vr(B+4+4*i,4)}, {vr(CSA+4*i,4)}")
                A(f"s_branch K1_CSR_{tag}_{lab}")
        stamp(1)
        A(".p2align 6")
        A.label(f"K1_LOOP_{tag}")
        A("s_barrier")
        phase(1, 0, 0); colsum(1, "a", 0)
        A("s_waitcnt lgkmcnt(0)"); phase(0, 1, 1); colsum(0, "b", 1)
        A("s_waitcnt lgkmcnt(0)"); phase(1, 2, 0); colsum(1, "c", 2)
        A("s_waitcnt lgkmcnt(0)"); phase(0, 3, 1); colsum(0, "d", 3)
        A(f"""
        s_add_u32 s{sRingI}, s{sRingI}, 1
        s_cmp_eq_u32 s{sRingI}, 3
        s_mov_b32 s{sDelta}, {RING}
        s_cselect_b32 s{sDelta}, {(-2*RING) & 0xffffffff}, s{sDelta}
        s_cselect_b32 s{sRingI}, 0, s{sRingI}
        """)
        for q in range(4): A(f"v_add_u32 v{vXa+q}, s{sDelta}, v{vXa+q}")
        A(f"v_add_u32 v{vWa}, s{sDelta}, v{vWa}")
        if newl and ch == 1:
            A(f"v_add_u32 v{vWB0}, s{sDelta}, v{vWB0}")
            A(f"v_add_u32 v{vWB1}, s{sDelta}, v{vWB1}")
        A(f"""
        s_add_u32 s{sC}, s{sC}, 1
        s_cmp_lt_u32 s{sC}, 10
        s_waitcnt lgkmcnt(0)
        s_cbranch_scc1 K1_LOOP_{tag}
        """)
        phase(1, None, None); colsum(1, "e", 0)
        stamp(2)
        A(f"""
        v_lshlrev_b32 v{T}, 4, v{vLane}
        s_lshl_b32 s58, s{sR}, 2
        s_add_u32 s58, s58, {L_CSP}
        v_add_u32 v{T}, s58, v{T}
        s_nop 6
        s_mov_b64 exec, 0xffff
        """)
        for i, (sl, ty) in enumerate(types):
            A(f"ds_write_b32 v{T}, v{CSA+4*i} offset:{sl*512}")
            A(f"ds_write_b32 v{T}, v{CSA+4*i+1} offset:{sl*512 + 256}")
        A("s_mov_b64 exec, -1")
        A(f"""
        v_add_f32 v{vS}, v{vS}, v{vS+1}
        v_add_f32 v{vS+2}, v{vS+2}, v{vS+3}
        v_mov_b32 v{T}, v{vS}
        v_mov_b32 v{T+1}, v{vS+2}
        s_nop 1
        v_permlane32_swap_b32 v{T}, v{vS}
        v_permlane32_swap_b32 v{T+1}, v{vS+2}
        s_lshl_b32 s58, s{sR}, 8
        s_add_u32 s58, s58, {L_ST + (1024 if ch == 1 else 0)}
        v_add_f32 v{vS}, v{vS}, v{T}
        v_add_f32 v{vS+1}, v{vS+2}, v{T+1}
        v_lshl_add_u32 v{T}, v{vM}, 3, s58
        s_nop 0
        """)
        A.lines.pop()
        A(f"""
        v_mov_b32 v{T+2}, v{vS}
        v_mov_b32 v{T+3}, v{vS+1}
        ds_write_b64 v{T}, {vr(T+2,2)}
        """)
        A(f"""
        s_and_b32 s{SRD_WS+1}, s{SRD_WS+1}, 0xffff
        s_mov_b32 s{SRD_WS+2}, {WS_SIZE}
        s_mov_b32 s{SRD_WS+3}, 0x00020000
        s_waitcnt lgkmcnt(0)
        s_barrier
        """)
        stamp(4)
        has_T = any(ty == "T" for _, ty in types)
        vNmu, vSd, vRs = vS, vS+1, vS+2
        BA = BUF[0]
        AA = BUF[0] + 4
        CP = BUF[1]
        B1r = BUF[0] + 12
        A(f"""
        s_lshl_b32 s58, s{sR}, 8
        s_add_u32 s58, s58, {L_ST}
        v_lshl_add_u32 v{T}, v{vM}, 3, s58
        ds_read_b64 {vr(T+4,2)}, v{T}
        ds_read_b64 {vr(T+6,2)}, v{T} offset:1024
        v_lshlrev_b32 v{T+1}, 4, v{vM}
        v_add_u32 v{T+1}, {L_CSP}, v{T+1}
        v_lshlrev_b32 v{T+2}, 2, v{vM}
        v_add_u32 v{T+2}, {L_B1}, v{T+2}
        """)
        for i, (sl, ty) in enumerate(types):
            A(f"ds_read_b128 {vr(CP+4*i,4)}, v{T+1} offset:{sl*512}")
            if ty == "H": A(f"ds_read_b32 v{B1r+i}, v{T+2} offset:{sl*128}")
            else: A(f"v_mov_b32 v{B1r+i}, 0")
        A(f"""
        v_cmp_eq_u32 vcc, 1, v{vHh}
        s_waitcnt lgkmcnt(0)
        v_add_f32 v{vNmu}, v{T+4}, v{T+6}
        v_add_f32 v{vSd}, v{T+5}, v{T+7}
        v_mul_f32 v{vNmu}, {hex(f2u(-1.0/640))}, v{vNmu}          ; -mu
        v_mul_f32 v{vSd}, {hex(f2u(1.0/640))}, v{vSd}
        v_fma_f32 v{vSd}, -v{vNmu}, v{vNmu}, v{vSd}               ; var
        v_max_f32 v{vSd}, 0, v{vSd}
        v_add_f32 v{vSd}, {hex(f2u(1e-5))}, v{vSd}
        v_rsq_f32 v{vRs}, v{vSd}
        s_nop 0
        v_mul_f32 v{vSd}, v{vSd}, v{vRs}                          ; sd
        v_cvt_pk_bf16_f32 v{BA}, v{vNmu}, v{vNmu}
        v_and_b32 v{T}, 0xffff0000, v{BA}
        v_sub_f32 v{T}, v{vNmu}, v{T}              ; nmu_lo
        v_cvt_pk_bf16_f32 v{BA+1}, v{T}, v{vSd}
        v_and_b32 v{T}, 0xffff0000, v{BA+1}
        v_sub_f32 v{T}, v{vSd}, v{T}               ; sd_lo
        v_cvt_pk_bf16_f32 v{T}, v{T}, 0
        v_cndmask_b32 v{BA}, v{BA}, v{T}, vcc
        v_cndmask_b32 v{BA+1}, v{BA+1}, 0, vcc
        """)
        A.lines[-1] = f"    v_cndmask_b32_e64 v{BA+1}, v{BA+1}, 0, vcc"
        for i, (sl, ty) in enumerate(types):
            c = CP + 4*i
            a0 = AA + 2*i
            A(f"v_add_f32 v{c}, v{c}, v{c+1}")
            A(f"v_add_f32 v{c+2}, v{c+2}, v{c+3}")
            A(f"v_add_f32 v{c}, v{c}, v{c+2}")
            A(f"v_cvt_pk_bf16_f32 v{c+1}, v{c}, v{c}")
            A(f"v_and_b32 v{c+2}, 0xffff0000, v{c+1}")
            A(f"v_sub_f32 v{c+2}, v{c}, v{c+2}")
            A(f"v_cvt_pk_bf16_f32 v{a0}, v{c}, v{c+2}")
            A(f"v_and_b32 v{c+1}, 0xffff, v{c+1}")
            A(f"v_lshl_or_b32 v{a0+1}, v{B1r+i}, 16, v{c+1}")
            A(f"v_cndmask_b32 v{a0}, v{a0}, v{B1r+i}, vcc")
            A(f"v_cndmask_b32_e64 v{a0+1}, v{a0+1}, 0, vcc")
        A("s_nop 1")
        for i, (sl, ty) in enumerate(types):
            acc = vr(ACC+16*i, 16)
            A(f"v_mfma_f32_32x32x8_bf16 {acc}, {vr(AA+2*i,2)}, {vr(BA,2)}, {acc}")
        PK = T
        if has_T:
            vA, vBq, vV = 6, 7, 8
            A(f"""
            s_lshl_b32 s58, s{sR}, 5
            v_add_u32 v9, s58, v{vM}
            v_mul_u32_u24 v{vA}, 40, v9
            v_mul_u32_u24 v{vV}, {VROW}, v9
            v_mul_u32_u24 v9, 5088, v{vHh}
            v_add_u32 v{vBq}, v{vA}, v9
            v_lshl_add_u32 v{vA}, v{vHh}, 3, v{vA}
            v_lshl_add_u32 v{vV}, v{vHh}, 3, v{vV}
            s_cmp_lt_u32 s{sCg}, 4
            s_cselect_b32 s60, {hex(f2u(C_Q))}, 1.0
            v_mul_f32 v{T+8}, s60, v{vRs}
            """)
        if ch == 1:
            A(f"""
            s_cmp_lg_u32 s{sCg}, 0
            s_cbranch_scc1 K1_NRS_{tag}
            v_mul_f32 v{T+9}, v{vRs}, v{vRs}
            s_lshl_b32 s58, s{sTT}, 7
            s_add_u32 s58, s58, {WS_RS2}
            v_lshlrev_b32 v{T+10}, 2, v{vM}
            s_mov_b32 exec_hi, 0
            buffer_store_dword v{T+9}, v{T+10}, s[{SRD_WS}:{SRD_WS+3}], s58 offen
            s_mov_b32 exec_hi, -1
            """)
            A.label(f"K1_NRS_{tag}")
        A("s_nop 7")
        A("s_nop 3")
        for i, (s, ty) in enumerate(types):
            acc = ACC + 16*i
            if ty == "T":
                for r in range(16):
                    A(f"v_mul_f32 v{acc+r}, v{acc+r}, v{T+8}")
                for j in range(8):
                    A(f"v_cvt_pk_bf16_f32 v{PK+j}, v{acc+2*j}, v{acc+2*j+1}")
                A(f"s_cmp_ge_u32 s{sCg}, 8")
                A(f"s_cbranch_scc1 K1_SV_{tag}_{i}")
                for g in range(4):
                    Z0 = 8*s + 2*g
                    hl, q0 = Z0 // 5, Z0 % 5
                    A(f"ds_write_b64 v{vA if q0 < 4 else vBq}, {vr(PK+2*g,2)} offset:{hl*5120 + q0*8}")
                A(f"s_branch K1_SE_{tag}_{i}")
                A.label(f"K1_SV_{tag}_{i}")
                for g in range(4):
                    A(f"ds_write_b64 v{vV}, {vr(PK+2*g,2)} offset:{(8*s + 2*g)*8}")
                A.label(f"K1_SE_{tag}_{i}")
            else:
                PH = BUF[1] + 8*(i & 1)
                for r in range(16):
                    A(f"v_max_f32 v{acc+r}, 0, v{acc+r}")
                for r in range(16):
                    A(f"v_mul_f32 v{acc+r}, v{acc+r}, v{acc+r}")
                for j in range(8):
                    A(f"v_cvt_pk_bf16_f32 v{PH+j}, v{acc+2*j}, v{acc+2*j+1}")
                A(f"""
                s_mul_i32 s58, s{sTT}, 96
                s_lshr_b32 s59, s{sCol+s}, 5             ; 2*ht
                s_add_u32 s58, s58, s59
                s_lshl_b32 s58, s58, 10
                s_add_u32 s58, s58, {WS_H}
                buffer_store_dwordx4 {vr(PH,4)}, v{vL16}, s[{SRD_WS}:{SRD_WS+3}], s58 offen
                buffer_store_dwordx4 {vr(PH+4,4)}, v{vL16}, s[{SRD_WS}:{SRD_WS+3}], s58 offen offset:1024
                """)
        if has_T:
            if not cfg.get("st2"): stamp(5)
            A("s_waitcnt lgkmcnt(0)")
            A("s_barrier")
            if not cfg.get("st2"): stamp(6)
            A(f"s_branch K1_COPYOUT")
        else:
            stamp(3)
            A("s_branch K1_FIN")
        emit_ool()

    gen_path("CH0A", 0, [(0, "T"), (1, "T"), (2, "T"), (3, "T")])
    gen_path("CH0B", 0, [(0, "H"), (1, "H"), (2, "H")])
    A.label("K1_CH1")
    A(f"s_setprio {cfg.get('prio1', 1)}")
    A(f"s_cmp_ge_u32 s{sCg}, 12")
    A("s_cbranch_scc1 K1_CH1B")
    gen_path("CH1A", 1, [(4, "T"), (5, "H"), (6, "H")])
    gen_path("CH1B", 1, [(4, "H"), (5, "H"), (6, "H")])

    A.label("K1_COPYOUT")
    D0 = 24
    A(f"s_cmp_ge_u32 s{sCg}, 8")
    A("s_cbranch_scc1 K1_COV")
    A(f"""
    s_mul_i32 s58, s{sW}, 5120
    v_add_u32 v5, s58, v{vL16}
    """)
    for j in range(5):
        A(f"ds_read_b128 {vr(D0+4*j,4)}, v5 offset:{1024*j}")
    A(f"""
    s_lshl_b32 s58, s{sCg}, 3
    s_add_u32 s58, s58, s{sW}
    s_cmp_ge_u32 s{sCg}, 4
    s_cbranch_scc1 K1_COK
    s_mul_i32 s58, s58, 81920
    s_mul_i32 s59, s{sRb}, 5120
    s_add_u32 s58, s58, s59
    s_add_u32 s58, s58, {WS_Q}
    s_waitcnt lgkmcnt(0)
    """)
    for j in range(5):
        if j == 4:
            A("s_add_u32 s58, s58, 4096")
            A(f"buffer_store_dwordx4 {vr(D0+4*j,4)}, v{vL16}, s[{SRD_WS}:{SRD_WS+3}], s58 offen")
        else:
            A(f"buffer_store_dwordx4 {vr(D0+4*j,4)}, v{vL16}, s[{SRD_WS}:{SRD_WS+3}], s58 offen offset:{1024*j}")
    stamp(3)
    A("s_branch K1_FIN")
    A.label("K1_COK")
    A(f"""
    s_sub_u32 s58, s58, 32
    s_mul_i32 s58, s58, 163840
    s_mul_i32 s59, s{sRb}, 10240
    s_add_u32 s58, s58, s59
    s_add_u32 s58, s58, {WS_KV}
    s_mov_b32 s61, 52429
    """)
    for j in range(5):
        A(f"""
        v_add_u32 v6, {1024*j}, v{vL16}
        v_lshrrev_b32 v7, 8, v6
        v_mul_lo_u32 v7, v7, s61
        v_lshrrev_b32 v7, 18, v7
        v_mul_u32_u24 v7, 1280, v7
        v_add_u32 v{44+j}, v6, v7
        """)
    A("s_waitcnt lgkmcnt(0)")
    for j in range(5):
        A(f"buffer_store_dwordx4 {vr(D0+4*j,4)}, v{44+j}, s[{SRD_WS}:{SRD_WS+3}], s58 offen")
    stamp(3)
    A("s_branch K1_FIN")
    A.label("K1_COV")
    A(f"""
    v_lshrrev_b32 v5, 4, v{vLane}           ; G
    v_and_b32 v6, 1, v5                     ; h
    v_lshrrev_b32 v7, 1, v5                 ; G>>1
    v_bfe_u32 v8, v{vLane}, 2, 2            ; r4
    v_lshl_add_u32 v8, v6, 2, v8            ; 4h + r4
    s_lshl_b32 s58, s{sW}, 4                ; 32tt + 16t = 16w
    v_add_u32 v8, s58, v8                   ; row (a=0)
    v_mul_u32_u24 v8, {VROW}, v8
    v_and_b32 v9, 3, v{vLane}
    v_lshl_add_u32 v8, v9, 3, v8            ; + c4*8
    v_lshl_add_u32 v8, v7, 5, v8            ; + (G>>1)*32 bytes
    """)
    for u in range(5):
        A(f"ds_read_b64_tr_b16 {vr(D0+4*u,2)}, v8 offset:{64*u}")
        A(f"ds_read_b64_tr_b16 {vr(D0+4*u+2,2)}, v8 offset:{64*u + 8*VROW}")
    A(f"""
    v_and_b32 v9, 15, v{vLane}
    v_lshl_add_u32 v9, v7, 4, v9
    v_mul_u32_u24 v6, 320, v6               ; h*320
    s_mov_b32 s61, 52429
    s_mov_b32 s62, 163840
    """)
    for u in range(5):
        A(f"""
        v_add_u32 v5, {32*u}, v9
        v_mul_lo_u32 v7, v5, s61
        v_lshrrev_b32 v7, 20, v7            ; hl
        v_mul_u32_u24 v8, 20, v7
        v_sub_u32 v5, v5, v8                ; d
        v_mul_lo_u32 v7, v7, s62
        v_lshl_add_u32 v5, v5, 4, v7
        v_add_u32 v{44+u}, v5, v6
        """)
    A(f"""
    s_sub_u32 s58, s{sCg}, 8
    s_mul_i32 s58, s58, {8*163840}
    s_lshr_b32 s59, s{sW}, 1
    s_lshl_b32 s60, s{sRb}, 2
    s_add_u32 s59, s59, s60
    s_mul_i32 s59, s59, 2560
    s_add_u32 s58, s58, s59
    s_and_b32 s59, s{sW}, 1
    s_mul_i32 s59, s59, 640
    s_add_u32 s58, s58, s59
    s_add_u32 s58, s58, {WS_KV + 1280}
    s_waitcnt lgkmcnt(0)
    """)
    for u in range(5):
        A(f"buffer_store_dwordx4 {vr(D0+4*u,4)}, v{44+u}, s[{SRD_WS}:{SRD_WS+3}], s58 offen")
    stamp(3)
    A.label("K1_FIN")
    if prof:
        A(f"""
        s_load_dwordx2 s[58:59], s[0:1], 72
        s_waitcnt lgkmcnt(0)
        s_cmp_lg_u32 s2, 0
        s_cbranch_scc1 K1_END
        s_mov_b64 exec, 1
        s_lshl_b32 s62, s{sW}, 5
        v_mov_b32 v1, s62
        s_sub_u32 s74, s74, s72
        s_sub_u32 s76, s76, s72
        s_sub_u32 s78, s78, s72
        s_sub_u32 s80, s80, s72
        s_sub_u32 s82, s82, s72
        s_sub_u32 s84, s84, s72
        v_mov_b32 v2, s76
        v_mov_b32 v3, s80
        v_mov_b32 v4, s82
        v_mov_b32 v5, s84
        global_store_dwordx4 v1, v[2:5], s[58:59]
        v_mov_b32 v2, s78
        global_store_dword v1, v2, s[58:59] offset:16
        """)
    A("s_endpgm")

    vWq, vW1o, vXe, vXo, vS1, vS2, vTr = 5, 6, 7, 8, 10, 11, 12
    A.label("K1_LOADER")
    A(f"s_setprio {cfg.get('prioL', 3)}")
    A(f"""
    v_lshrrev_b32 v9, 2, v{vLane}
    v_and_b32 v13, 3, v{vLane}
    v_lshlrev_b32 v13, 4, v13
    v_mul_u32_u24 v{vWq}, 3840, v9
    v_add_u32 v{vWq}, v{vWq}, v13
    v_mul_u32_u24 v{vW1o}, 3072, v9
    v_add_u32 v{vW1o}, v{vW1o}, v13
    v_lshrrev_b32 v9, 3, v{vLane}
    v_mul_u32_u24 v{vXe}, 1280, v9
    v_lshrrev_b32 v9, 4, v{vLane}
    v_and_b32 v13, 7, v{vLane}
    v_xor_b32 v14, v13, v9
    v_lshlrev_b32 v14, 4, v14
    v_xor_b32 v9, 4, v9
    v_xor_b32 v9, v13, v9
    v_lshlrev_b32 v9, 4, v9
    v_add_u32 v{vXo}, v{vXe}, v9
    v_add_u32 v{vXe}, v{vXe}, v14
    """)
    for j in range(5):
        A(f"""
        v_add_u32 v9, {1024*j}, v{vL16}
        v_lshrrev_b32 v13, 6, v9
        v_mul_u32_u24 v13, 52429, v13
        v_lshrrev_b32 v13, 18, v13              ; row = L/320
        v_mul_u32_u24 v14, 320, v13
        v_sub_u32 v14, v9, v14
        v_mul_u32_u24 v13, 3840, v13
        v_add_u32 v{20+j}, v13, v14
        """)
    A(f"""
    v_lshrrev_b32 v9, 3, v{vLane}
    v_mul_u32_u24 v25, 3072, v9
    v_bfe_u32 v9, v{vLane}, 4, 1
    v_lshlrev_b32 v9, 2, v9
    v_and_b32 v13, 7, v{vLane}
    v_xor_b32 v9, v9, v13
    v_lshl_add_u32 v25, v9, 4, v25
    s_mov_b32 s{sRingD}, 0
    ; x soffsets
    s_lshl_b32 s58, s{sRb}, 7
    s_lshl_b32 s59, s{sR}, 5
    s_add_u32 s58, s58, s59
    s_mul_i32 s58, s58, 1280
    """)
    for i in range(4): A(f"s_add_u32 s{sSo+i}, s58, {i*8*1280}")
    A(f"""
    s_lshr_b32 s58, s2, 3
    s_lshr_b32 s59, s58, 3
    s_and_b32 s58, s58, 7
    s_mul_i32 s59, s59, {cfg.get("rotm", 3)}
    s_add_u32 s58, s58, s59
    s_cmp_ge_u32 s58, 10
    s_cselect_b32 s59, 10, 0
    s_sub_u32 s70, s58, s59
    s_cmp_ge_u32 s70, 10
    s_cselect_b32 s59, 10, 0
    s_sub_u32 s70, s70, s59
    """)
    if cfg.get("norot"): A("s_mov_b32 s70, 0")
    A("s_lshl_b32 s59, s70, 7")
    for i in range(4): A(f"s_add_u32 s{sSo+i}, s{sSo+i}, s59")
    A(f"""
    s_mul_i32 s58, s{sR}, {16*3840}
    s_mul_i32 s59, s{sR}, {16*3072}
    s_cmp_ge_u32 s{sCg}, 12
    s_cselect_b32 s58, s59, s58
    """)
    for s in range(5): A(f"s_add_u32 s{sSo+4+s}, s58, s{sCol+s}")
    for s in (5, 6): A(f"s_add_u32 s{sSo+4+s}, s59, s{sCol+s}")
    A(f"""
    s_mov_b32 s58, {64*3840}
    s_cmp_ge_u32 s{sCg}, 12
    s_cselect_b32 s58, {64*3072}, s58
    s_mul_i32 s58, s58, s70
    s_mul_i32 s59, s70, {64*3072}
    """)
    for s in range(5): A(f"s_add_u32 s{sSo+4+s}, s{sSo+4+s}, s58")
    for s in (5, 6): A(f"s_add_u32 s{sSo+4+s}, s{sSo+4+s}, s59")
    A(f"""
    s_cmp_ge_u32 s{sCg}, 12
    s_cbranch_scc1 K1_LOLD
    s_add_u32 s{sSo+10}, s{sSo+9}, {8*3072}
    """)
    A.label("K1_LOLD")
    if prof: A("s_memtime s[88:89]")
    A(f"""
    s_waitcnt lgkmcnt(0)
    """)
    if prof: A("s_memtime s[90:91]")
    A(f"""
    s_mov_b32 s{SRD_X}, s4
    s_and_b32 s{SRD_X+1}, s5, 0xffff
    s_mov_b32 s{SRD_X+2}, 2621440
    s_mov_b32 s{SRD_X+3}, 0x00020000
    s_mov_b32 s{SRD_W1}, s64
    s_and_b32 s{SRD_W1+1}, s65, 0xffff
    s_mov_b32 s{SRD_W1+2}, 1966080
    s_mov_b32 s{SRD_W1+3}, 0x00020000
    s_and_b32 s{SRD_WS+1}, s{SRD_WS+1}, 0xffff
    s_mov_b32 s{SRD_WS+2}, {WS_SIZE}
    s_mov_b32 s{SRD_WS+3}, 0x00020000
    s_cmp_ge_u32 s{sCg}, 12
    s_cselect_b32 s{SRD_WQ}, s64, s6
    s_cselect_b32 s{SRD_WQ+1}, s65, s7
    s_and_b32 s{SRD_WQ+1}, s{SRD_WQ+1}, 0xffff
    s_cmp_ge_u32 s{sCg}, 12
    s_mov_b32 s{SRD_WQ+2}, 2457600
    s_cselect_b32 s{SRD_WQ+2}, 1966080, s{SRD_WQ+2}
    s_mov_b32 s{SRD_WQ+3}, 0x00020000
    s_mov_b32 s68, {64*3840}
    s_cselect_b32 s68, {64*3072}, s68
    s_cselect_b32 s69, 0, 1
    s_cselect_b64 vcc, -1, 0
    v_cndmask_b32 v15, v{vWq}, v{vW1o}, vcc
    """)
    vWa5 = 15
    def dma_groups(new):
        G = []
        head = f"""
        s_add_u32 s70, s70, 1
        s_cmp_eq_u32 s70, 10
        s_cselect_b32 s70, 0, s70
        s_mov_b32 s71, 128
        s_cselect_b32 s71, {(-9*128) & 0xffffffff}, s71
        s_mul_i32 s86, s68, -9
        s_cselect_b32 s86, s86, s68
        s_mov_b32 s87, {64*3072}
        s_cselect_b32 s87, {(-9*64*3072) & 0xffffffff}, s87
        s_lshl_b32 s58, s{sR}, 12
        s_add_u32 s58, s58, s{sRingD}
        """.strip().split("\n")
        G.append(head)
        for i in range(4):
            mid = "s_nop 0" if i == 0 else f"s_add_u32 s{sSo+i-1}, s{sSo+i-1}, s71"
            G.append([f"s_add_u32 m0, s58, {i*1024}", mid,
                      f"buffer_load_dwordx4 v{vXe if i % 2 == 0 else vXo}, s[{SRD_X}:{SRD_X+3}], s{sSo+i} offen lds"]
                     + ([f"s_add_u32 s{sSo+i}, s{sSo+i}, s71"] if i == 3 else []))
        if new:
            pre = [f"s_mul_i32 s58, s{sR}, 5120", f"s_add_u32 s58, s58, s{sRingD}", f"s_lshl_b32 s59, s{sR}, 11", f"s_add_u32 s59, s59, s{sRingD}"]
            for j in range(5):
                g = (pre if j == 0 else []) + [f"s_add_u32 m0, s58, {16384 + j*1024}", "s_nop 0",
                     f"buffer_load_dwordx4 v{20+j}, s[{SRD_WQ}:{SRD_WQ+3}], s{sSo+4} offen lds"]
                if j == 4: g.append(f"s_add_u32 s{sSo+4}, s{sSo+4}, s86")
                G.append(g)
            for j in range(2):
                G.append([f"s_add_u32 m0, s59, {36864 + j*1024}", "s_nop 0",
                          f"buffer_load_dwordx4 v25, s[{SRD_W1}:{SRD_W1+3}], s{sSo+9+j} offen lds",
                          f"s_add_u32 s{sSo+9+j}, s{sSo+9+j}, s87"])
        else:
            pre = [f"s_lshl_b32 s58, s{sR}, 10", f"s_add_u32 s58, s58, s{sRingD}"]
            for sl in range(7):
                so = sSo + 4 + sl
                g = (pre if sl == 0 else []) + [f"s_add_u32 m0, s58, {16384 + sl*4096}", "s_nop 0"]
                if sl < 5:
                    g += [f"buffer_load_dwordx4 v{vWa5}, s[{SRD_WQ}:{SRD_WQ+3}], s{so} offen lds", f"s_add_u32 s{so}, s{so}, s86"]
                else:
                    g += [f"buffer_load_dwordx4 v{vW1o}, s[{SRD_W1}:{SRD_W1+3}], s{so} offen lds", f"s_add_u32 s{so}, s{so}, s87"]
                G.append(g)
        G[-1] = G[-1] + [f"s_add_u32 s{sRingD}, s{sRingD}, {RING}", f"s_cmp_eq_u32 s{sRingD}, {3*RING}", f"s_cselect_b32 s{sRingD}, 0, s{sRingD}"]
        return G
    def stat_items():
        it = [[f"ds_read_b128 {vr(48+4*q,4)}, v{40+q}" for q in range(4)]]
        for q in range(4):
            for k in range(4):
                x = 48 + 4*q + k
                t0, t1 = 64 + 2*(k & 1), 65 + 2*(k & 1)
                g = []
                if k == 0: g.append(f"s_waitcnt lgkmcnt({3-q})")
                g += [f"v_lshlrev_b32 v{t0}, 16, v{x}", f"v_and_b32 v{t1}, 0xffff0000, v{x}",
                      f"v_add_f32 v44, v44, v{t0}", f"v_add_f32 v45, v45, v{t1}",
                      f"v_fma_f32 v46, v{t0}, v{t0}, v46", f"v_fma_f32 v47, v{t1}, v{t1}, v47"]
                it.append(g)
        return it
    def issue_dma(tag, with_stats=False):
        A(f"s_cmp_ge_u32 s{sCg}, 12")
        A(f"s_cbranch_scc1 K1_DO_{tag}")
        for new in (True, False):
            G = dma_groups(new)
            S_ = stat_items() if with_stats else []
            if S_:
                for l in S_[0]: A(l)
                S_ = S_[1:]
            nG = len(G)
            k = 0
            for gi, g in enumerate(G):
                for l in g: A(l)
                want = (len(S_) * (gi + 1)) // nG
                while k < want:
                    for l in S_[k]: A(l)
                    k += 1
            if new:
                A(f"s_branch K1_DE_{tag}")
                A.label(f"K1_DO_{tag}")
        A.label(f"K1_DE_{tag}")
    issue_dma("p0")
    if prof: A("s_memtime s[92:93]")
    issue_dma("p1")
    A(f"""
    """)
    A(f"s_cmp_eq_u32 s{sR}, 0")
    A(f"s_cselect_b32 s58, s{sCol+0}, s{sCol+2}")
    A(f"s_cselect_b32 s59, s{sCol+1}, s{sCol+3}")
    A(f"s_cmp_eq_u32 s{sR}, 2")
    A(f"s_cselect_b32 s58, s{sCol+4}, s58")
    A(f"s_cselect_b32 s59, s{sCol+5}, s59")
    A(f"s_cmp_eq_u32 s{sR}, 3")
    A(f"s_cselect_b32 s58, s{sCol+6}, s58")
    A(f"s_cselect_b32 s59, s{sCol+6}, s59")
    A(f"""
    v_mov_b32 v9, s58
    v_mov_b32 v13, s59
    v_cmp_eq_u32 vcc, 1, v{vHh}
    s_nop 1
    v_cndmask_b32 v9, v9, v13, vcc
    v_lshl_add_u32 v9, v{vM}, 1, v9
    v_min_u32 v9, 3070, v9
    global_load_ushort v16, v9, s[66:67]
    """)
    A(f"""
    v_lshrrev_b32 v9, 2, v{vLane}
    v_bfe_u32 v13, v9, 2, 1
    v_lshrrev_b32 v14, 3, v9
    v_and_b32 v9, 3, v9
    v_lshl_add_u32 v{vS1}, v13, 3, v9
    v_lshl_add_u32 v{vS1}, v14, 2, v{vS1}
    v_mul_u32_u24 v{vS1}, 1280, v{vS1}
    v_lshl_add_u32 v{vS2}, v14, 1, v13
    v_mul_u32_u24 v{vS2}, 20, v{vS2}
    v_add_u32 v{vS2}, v{vS2}, v9
    v_mul_u32_u24 v{vS2}, 1280, v{vS2}
    v_and_b32 v9, 3, v{vLane}
    v_lshlrev_b32 v9, 4, v9
    v_add_u32 v{vS1}, v{vS1}, v9
    v_add_u32 v{vS2}, v{vS2}, v9
    v_lshrrev_b32 v9, 5, v{vLane}
    v_lshlrev_b32 v9, 9, v9
    v_bfe_u32 v13, v{vLane}, 2, 2
    v_lshl_add_u32 v9, v13, 6, v9
    v_bfe_u32 v13, v{vLane}, 4, 1
    v_lshl_add_u32 v9, v13, 5, v9
    v_and_b32 v13, 3, v{vLane}
    v_lshl_add_u32 v{vTr}, v13, 3, v9
    s_lshl_b32 s{sGw}, s2, 2
    s_add_u32 s{sGw}, s{sGw}, s{sR}
    """)
    for i in range(3):
        skip = f"K1_SIDE_SKIP{i}"
        A(f"""
        s_add_u32 s58, s{sGw}, {1024*i}
        s_mul_i32 s59, s{sR}, 3072
        s_add_u32 m0, s59, {L_SIDE + 1024*i}
        s_cmp_ge_u32 s58, 1920
        s_cbranch_scc1 K1_SIDE_WO{i}
        s_mul_i32 s59, s58, 43691
        s_lshr_b32 s59, s59, 22
        s_mul_i32 s4, s59, 96
        s_sub_u32 s4, s58, s4
        s_mul_i32 s4, s4, {16*1280}
        s_lshl_b32 s59, s59, 6
        s_add_u32 s4, s4, s59
        s_mov_b32 s{SRD_T}, s62
        s_and_b32 s{SRD_T+1}, s63, 0xffff
        s_mov_b32 s{SRD_T+2}, 1966080
        s_mov_b32 s{SRD_T+3}, 0x00020000
        buffer_load_dwordx4 v{vS1}, s[{SRD_T}:{SRD_T+3}], s4 offen lds
        s_branch {skip}
        """)
        A.label(f"K1_SIDE_WO{i}")
        A(f"""
        s_sub_u32 s58, s58, 1920
        s_mul_i32 s59, s58, 52429
        s_lshr_b32 s59, s59, 21
        s_mul_i32 s4, s59, 40
        s_sub_u32 s4, s58, s4
        s_mul_i32 s5, s4, 52429
        s_lshr_b32 s5, s5, 18
        s_mul_i32 s6, s5, 5
        s_sub_u32 s6, s4, s6
        s_lshl_b32 s59, s59, 6
        s_mov_b32 s{SRD_T}, s60
        s_and_b32 s{SRD_T+1}, s61, 0xffff
        s_mov_b32 s{SRD_T+2}, 819200
        s_mov_b32 s{SRD_T+3}, 0x00020000
        s_cmp_eq_u32 s6, 4
        s_cbranch_scc1 K1_SIDE_WOT{i}
        s_lshl_b32 s5, s5, 2
        s_add_u32 s5, s5, s6
        s_mul_i32 s5, s5, {20*1280}
        s_add_u32 s5, s5, s59
        buffer_load_dwordx4 v{vS1}, s[{SRD_T}:{SRD_T+3}], s5 offen lds
        s_branch {skip}
        """)
        A.label(f"K1_SIDE_WOT{i}")
        A(f"""
        s_mul_i32 s5, s5, {80*1280}
        s_add_u32 s5, s5, {16*1280}
        s_add_u32 s5, s5, s59
        buffer_load_dwordx4 v{vS1+1}, s[{SRD_T}:{SRD_T+3}], s5 offen lds
        """)
        A.label(skip)
    A.label("K1_LLOOP")
    A(f"""
    s_cmp_eq_u32 s{sC}, 0
    s_cbranch_scc1 K1_LW0
    s_cmp_eq_u32 s{sC}, 9
    s_cbranch_scc1 K1_LW9
    s_waitcnt vmcnt(11)
    s_branch K1_LWD
    """)
    A.label("K1_LW0")
    A("s_waitcnt vmcnt(15)")
    A("s_branch K1_LWD")
    A.label("K1_LW9")
    A("s_waitcnt vmcnt(0)")
    A.label("K1_LWD")
    if prof:
        A(f"""
        s_memtime s[80:81]
        s_waitcnt lgkmcnt(0)
        s_sub_u32 s80, s80, s72
        s_mov_b32 m0, s{sC}
        s_nop 0
        v_writelane_b32 v70, s80, m0
        """)
    A(f"""
    s_waitcnt lgkmcnt(0)
    s_barrier
    """)
    if prof:
        A(f"""
        s_memtime s[80:81]
        s_waitcnt lgkmcnt(0)
        s_sub_u32 s80, s80, s72
        s_mov_b32 m0, s{sC}
        s_nop 0
        v_writelane_b32 v71, s80, m0
        """)
    A(f"""
    s_cmp_lg_u32 s{sC}, 1
    s_cbranch_scc1 K1_LNS
    """)
    A(f"""
    s_lshl_b32 s58, s{sR}, 8
    s_add_u32 s58, s58, {L_B1}
    v_lshl_add_u32 v9, v{vLane}, 2, s58
    s_cmp_eq_u32 s{sR}, 3
    s_cselect_b32 exec_hi, 0, -1
    ds_write_b32 v9, v16
    s_mov_b32 exec_hi, -1
    """)
    for i in range(3):
        A(f"""
        s_add_u32 s58, s{sGw}, {1024*i}
        s_cmp_ge_u32 s58, 2720
        s_cbranch_scc1 K1_LNS
        s_mul_i32 s59, s{sR}, 3072
        s_add_u32 s59, s59, {L_SIDE + 1024*i}
        v_add_u32 v9, s59, v{vTr}
        ds_read_b64_tr_b16 v[28:29], v9
        ds_read_b64_tr_b16 v[30:31], v9 offset:256
        s_lshl_b32 s58, s58, 10
        s_add_u32 s58, s58, {WS_W2F}
        s_waitcnt lgkmcnt(0)
        buffer_store_dwordx4 v[28:31], v{vL16}, s[{SRD_WS}:{SRD_WS+3}], s58 offen
        s_nop 1
        """)
    A.label("K1_LNS")
    A(f"""
    s_cmp_ge_u32 s{sC}, 8
    s_cbranch_scc1 K1_LND
    """)
    issue_dma("l", with_stats=False)
    A.label("K1_LND")
    if prof:
        A(f"""
        s_memtime s[80:81]
        s_waitcnt lgkmcnt(0)
        s_sub_u32 s80, s80, s72
        s_mov_b32 m0, s{sC}
        s_nop 0
        v_writelane_b32 v72, s80, m0
        """)
    A(f"""
    s_add_u32 s{sC}, s{sC}, 1
    s_cmp_lt_u32 s{sC}, 10
    s_cbranch_scc1 K1_LLOOP
    """)
    if prof:
        A(f"""
        s_load_dwordx2 s[58:59], s[0:1], 72
        s_waitcnt lgkmcnt(0)
        s_cmp_lg_u32 s2, 0
        s_cbranch_scc1 K1_END
        s_cmp_lg_u32 s{sW}, 8
        s_cbranch_scc1 K1_END
        v_lshlrev_b32 v1, 2, v{vLane}
        s_mov_b64 exec, 0x3ff
        global_store_dword v1, v70, s[58:59] offset:256
        global_store_dword v1, v71, s[58:59] offset:296
        global_store_dword v1, v72, s[58:59] offset:336
        s_sub_u32 s88, s88, s72
        s_sub_u32 s90, s90, s72
        s_sub_u32 s92, s92, s72
        s_mov_b64 exec, 1
        v_mov_b32 v2, s88
        v_mov_b32 v3, s90
        v_mov_b32 v4, s92
        v_mov_b32 v1, 0
        global_store_dwordx3 v1, v[2:4], s[58:59] offset:376
        """)
    A.label("K1_END")
    A("s_endpgm")
    kernel_footer(A, name, 168, 96)
```

```python
from asmlib import *

WS_Q   = 0x0
WS_KV  = 0x280000
WS_H   = 0x780000
WS_O   = 0xD80000
WS_W2F = 0x1000000
WS_WOF = 0x11E0000
WS_PART= 0x1300000
WS_SIZE= 0x2000000

OFFSET = 64.0
NSAMP_PAIRS = 2

import struct
def f2u(f):
    return struct.unpack("<I", struct.pack("<f", f))[0]

WS_RS2 = 0x12F0000

def gen_gemm_waves(A, cfg):
    NST = cfg.get("nst", 8)
    ACC0, ACC1 = 16, 32
    HB, WB = 48, 48 + 4*NST
    A.label("K2_GEMM")
    A(f"s_setprio {cfg.get('gprio', 0)}")
    A(f"""
    s_load_dwordx2 s[24:25], s[0:1], 0       ; x
    s_load_dwordx2 s[28:29], s[0:1], 56      ; b2
    s_sub_u32 s14, s14, 8                    ; w
    v_lshlrev_b32 v3, 4, v1
    s_and_b32 s12, s2, 7
    s_lshr_b32 s13, s2, 5
    s_lshl_b32 s13, s13, 3
    s_add_u32 s12, s12, s13
    s_lshr_b32 s13, s2, 3
    s_and_b32 s13, s13, 3
    s_waitcnt lgkmcnt(0)
    s_mov_b32 s8, s4
    s_and_b32 s9, s5, 0xffff
    s_mov_b32 s10, {WS_SIZE}
    s_mov_b32 s11, 0x00020000
    s_barrier
    s_barrier
    """)
    if cfg.get("prof"): A("s_memtime s[42:43]")
    A(f"""
    v_and_b32 v4, 31, v1
    v_lshrrev_b32 v6, 5, v1
    v_lshlrev_b32 v7, 2, v4
    s_lshl_b32 s15, s12, 7
    s_add_u32 s15, s15, {WS_RS2}
    buffer_load_dword v5, v7, s[8:11], s15 offen
    s_lshl_b32 s16, s12, 5
    v_add_u32 v7, s16, v4                     ; token
    v_mul_u32_u24 v7, 1280, v7
    v_lshl_add_u32 v7, v6, 3, v7
    s_mul_i32 s17, s13, 320
    s_lshl_b32 s18, s14, 6
    s_add_u32 s18, s18, s17
    s_add_u32 s17, s17, 256
    v_add_u32 v8, s18, v7
    v_add_u32 v9, s17, v7
    v_lshlrev_b32 v10, 3, v6
    v_add_u32 v11, s17, v10
    v_add_u32 v10, s18, v10
    """)
    XR = WB + 4*NST
    for g in range(4):
        A(f"global_load_dwordx2 {vr(XR+2*g,2)}, v8, s[24:25] offset:{16*g}")
        A(f"global_load_dwordx2 {vr(XR+8+2*g,2)}, v10, s[28:29] offset:{16*g}")
    A("s_cmp_lg_u32 s14, 0")
    A("s_cbranch_scc1 K2G_NOX")
    for g in range(4):
        A(f"global_load_dwordx2 {vr(XR+16+2*g,2)}, v9, s[24:25] offset:{16*g}")
        A(f"global_load_dwordx2 {vr(XR+24+2*g,2)}, v11, s[28:29] offset:{16*g}")
    A.label("K2G_NOX")
    for r in range(32): A(f"v_mov_b32 v{16+r}, 0")
    def run_pass(tag, acc, nsteps):
        def ld(st):
            A(f"buffer_load_dwordx4 {vr(HB+4*st,4)}, v3, s[8:11], s20 offen")
            A(f"buffer_load_dwordx4 {vr(WB+4*st,4)}, v3, s[8:11], s21 offen")
            A("s_add_u32 s20, s20, 1024")
            A("s_add_u32 s21, s21, 1024")
            A("s_cmp_eq_u32 s20, s26")
            A("s_cselect_b32 s20, s22, s20")
            A("s_cselect_b32 s21, s23, s21")
        for st in range(NST-1): ld(st)
        A(f"s_mov_b32 s27, {nsteps // NST}")
        A.label(f"K2G_L{tag}")
        for st in range(NST):
            ld((st + NST - 1) % NST)
            A(f"s_waitcnt vmcnt({2*(NST-1)})")
            A(f"v_mfma_f32_32x32x16_bf16 {vr(acc,16)}, {vr(WB+4*st,4)}, {vr(HB+4*st,4)}, {vr(acc,16)}")
        A("s_sub_u32 s27, s27, 1")
        A("s_cmp_lg_u32 s27, 0")
        A(f"s_cbranch_scc1 K2G_L{tag}")
    A(f"""
    s_mul_i32 s22, s12, {96*1024}
    s_add_u32 s22, s22, {WS_H}               ; H base
    s_add_u32 s26, s22, {96*1024}
    s_mul_i32 s23, s13, 5
    s_add_u32 s19, s23, 4
    s_add_u32 s23, s23, s14
    s_mul_i32 s23, s23, {96*1024}
    s_add_u32 s23, s23, {WS_W2F}
    s_lshr_b32 s15, s2, 3
    s_and_b32 s15, s15, 7
    s_mul_i32 s15, s15, {12*1024}
    s_add_u32 s20, s22, s15
    s_add_u32 s21, s23, s15
    """)
    run_pass("A", ACC0, 96)
    if cfg.get("prof"): A("s_memtime s[44:45]")
    A(f"""
    s_mul_i32 s15, s14, {24*1024}
    s_add_u32 s22, s22, s15
    s_add_u32 s26, s22, {24*1024}
    s_mul_i32 s23, s19, {96*1024}
    s_add_u32 s23, s23, {WS_W2F}
    s_add_u32 s23, s23, s15
    s_mov_b32 s20, s22
    s_mov_b32 s21, s23
    """)
    run_pass("B", ACC1, 24)
    if cfg.get("prof"): A("s_memtime s[46:47]")
    A("s_waitcnt vmcnt(0)")
    A("s_nop 15")
    for r in range(32): A(f"v_mul_f32 v{16+r}, v{16+r}, v5")
    def addbf(dst, src_reg, hi):
        if hi: A(f"v_and_b32 v12, 0xffff0000, v{src_reg}")
        else:  A(f"v_lshlrev_b32 v12, 16, v{src_reg}")
        A(f"v_add_f32 v{dst}, v{dst}, v12")
    for g in range(4):
        for i in range(4):
            addbf(ACC0+4*g+i, XR+2*g+(i>>1), i & 1)
            addbf(ACC0+4*g+i, XR+8+2*g+(i>>1), i & 1)
    A("s_cmp_lg_u32 s14, 0")
    A("s_cbranch_scc1 K2G_NOX2")
    for g in range(4):
        for i in range(4):
            addbf(ACC1+4*g+i, XR+16+2*g+(i>>1), i & 1)
            addbf(ACC1+4*g+i, XR+24+2*g+(i>>1), i & 1)
    A.label("K2G_NOX2")
    A(f"""
    s_lshl_b32 s16, s12, 2
    s_add_u32 s16, s16, s13
    s_lshl_b32 s16, s16, 15
    s_lshl_b32 s17, s14, 12
    s_add_u32 s16, s16, s17
    s_add_u32 s16, s16, {WS_PART}
    """)
    for g in range(4):
        A(f"buffer_store_dwordx4 {vr(ACC0+4*g,4)}, v3, s[8:11], s16 offen offset:{1024*g}")
    A("s_add_u32 s16, s16, 16384")
    for g in range(4):
        A(f"buffer_store_dwordx4 {vr(ACC1+4*g,4)}, v3, s[8:11], s16 offen offset:{1024*g}")
    if cfg.get("prof"):
        A(f"""
        s_memtime s[48:49]
        s_load_dwordx2 s[30:31], s[0:1], 72
        s_waitcnt lgkmcnt(0)
        s_cmp_lg_u32 s2, 0
        s_cbranch_scc1 K2_END
        s_mov_b64 exec, 1
        s_lshl_b32 s32, s14, 4
        v_mov_b32 v1, s32
        s_sub_u32 s42, s42, s40
        s_sub_u32 s44, s44, s40
        s_sub_u32 s46, s46, s40
        s_sub_u32 s48, s48, s40
        v_mov_b32 v2, s42
        v_mov_b32 v3, s44
        v_mov_b32 v4, s46
        v_mov_b32 v5, s48
        global_store_dwordx4 v1, v[2:5], s[30:31] offset:256
        """)
    A("s_endpgm")

def gen_k2(A, name="k2_kernel", cfg=None):
    cfg = cfg or {}
    nsamp = cfg.get("nsamp_pairs", NSAMP_PAIRS)
    offset = cfg.get("offset", OFFSET)
    vLane16 = 7
    vK1a, vK2a, vVa = 2, 3, 4
    Q1, Q2 = 8, 12
    KF1, KF2 = 16, 20
    VB = [24, 32]
    P0, P1 = 40, 44
    NEGM = 48
    S = [64, 80]
    O = 96
    T = 112
    sHead, sQb, sWave = 12, 13, 14
    sMask = 16
    sCnt, sOff, sFlag, sNs, sOffs = 18, 19, 20, 21, 22
    prof = cfg.get("prof", False)
    def stamp(i):
        if prof:
            A(f"s_memtime s[{40+2*i}:{41+2*i}]")
    kernel_header(A, name)
    stamp(0)
    if prof:
        A("s_memrealtime s[52:53]")
    A(f"""
    s_cmp_ge_u32 s2, 256
    s_cbranch_scc1 K2_END
    s_load_dwordx2 s[4:5], s[0:1], 80
    v_and_b32 v1, 63, v0
    v_lshrrev_b32 v2, 6, v0
    s_and_b32 s{sHead}, s2, 7
    v_readfirstlane_b32 s{sWave}, v2
    """)
    if cfg.get("merge", True):
        A(f"""
        s_nop 1
        s_cmp_ge_u32 s{sWave}, 8
        s_cbranch_scc1 K2_GEMM
        """)
    A(f"""
    s_lshl_b32 s{sHead}, s{sHead}, 2
    s_lshr_b32 s{sQb}, s2, 6
    s_add_u32 s{sHead}, s{sHead}, s{sQb}
    s_lshr_b32 s{sQb}, s2, 3
    s_and_b32 s{sQb}, s{sQb}, 7
    v_and_b32 v5, 31, v1
    v_lshrrev_b32 v6, 5, v1
    v_lshlrev_b32 v{vLane16}, 4, v1
    v_mul_u32_u24 v{vK1a}, 40, v5
    v_add_u32 v{vK2a}, 32, v{vK1a}
    v_lshl_add_u32 v{vK1a}, v6, 4, v{vK1a}
    v_mul_u32_u24 v{vVa}, 320, v6
    v_lshl_add_u32 v{vVa}, v5, 4, v{vVa}
    v_add_u32 v{vVa}, 1280, v{vVa}
    s_mov_b32 s{sMask}, 0x000fffff
    s_mov_b32 s{sMask+1}, 0x000fffff
    v_mov_b32 v{Q2}, 0
    v_mov_b32 v{Q2+1}, 0
    s_waitcnt lgkmcnt(0)
    s_mov_b32 s8, s4
    s_and_b32 s9, s5, 0xffff
    s_mov_b32 s10, {WS_SIZE}
    s_mov_b32 s11, 0x00020000
    ; Q loads
    s_mul_i32 s{sOff}, s{sHead}, 81920
    s_lshl_b32 s24, s{sQb}, 8
    s_lshl_b32 s25, s{sWave}, 5
    s_add_u32 s24, s24, s25
    s_mul_i32 s25, s24, 40
    s_add_u32 s{sOff}, s{sOff}, s25
    s_add_u32 s{sOff}, s{sOff}, {WS_Q}
    buffer_load_dwordx4 {vr(Q1,4)}, v{vK1a}, s[8:11], s{sOff} offen
    s_mov_b32 exec_hi, 0
    buffer_load_dwordx2 {vr(Q2,2)}, v{vK2a}, s[8:11], s{sOff} offen
    s_mov_b32 exec_hi, -1
    s_mul_i32 s{sOff}, s{sHead}, 163840
    s_lshl_b32 s25, s{sWave}, 10
    s_add_u32 s{sOff}, s{sOff}, s25
    s_add_u32 s{sOff}, s{sOff}, {WS_KV}
    s_mov_b32 m0, s25
    """)
    for i in range(20):
        A(f"buffer_load_dwordx4 v{vLane16}, s[8:11], s{sOff} offen lds")
        if i < 19:
            A(f"s_add_u32 m0, m0, 8192")
            A(f"s_add_u32 s{sOff}, s{sOff}, 8192")
    for b in VB:
        for r in range(8):
            A(f"v_mov_b32 v{b+r}, 0x3f803f80")
    A(f"""
    s_mov_b32 s{sFlag}, 0
    s_mov_b32 s{sNs}, {nsamp}
    s_mov_b32 s{sOffs}, {hex(f2u(-offset))}
    s_waitcnt vmcnt(16)
    s_barrier
    """)
    stamp(1)
    if cfg.get("solo"):
        A(f"s_cmp_ge_u32 s{sWave}, 4")
        A("s_cbranch_scc1 K2_END")
    A.label("K2_SAMPLE")
    vA, vB2, vMax = T, T+1, T+2
    KB1, KB2 = P0, P1
    A(f"""
    v_mov_b32 v{vA}, v{vK1a}
    v_mov_b32 v{vB2}, v{vK2a}
    v_mov_b32 v{vMax}, 0xff800000
    s_mov_b32 s{sCnt}, s{sNs}
    ds_read_b64 {vr(KF1,2)}, v{vA}
    ds_read_b64 {vr(KF1+2,2)}, v{vA} offset:8
    ds_read_b64 {vr(KF2,2)}, v{vB2}
    ds_read_b64 {vr(KB1,2)}, v{vA} offset:2560
    ds_read_b64 {vr(KB1+2,2)}, v{vA} offset:2568
    ds_read_b64 {vr(KB2,2)}, v{vB2} offset:2560
    """)
    A.label("K2_SLOOP")
    A(f"""
    s_waitcnt lgkmcnt(0)
    v_mfma_f32_32x32x16_bf16 {vr(S[0],16)}, {vr(KF1,4)}, {vr(Q1,4)}, 0
    v_mfma_f32_32x32x16_bf16 {vr(S[1],16)}, {vr(KB1,4)}, {vr(Q1,4)}, 0
    v_mfma_f32_32x32x8_bf16 {vr(S[0],16)}, {vr(KF2,2)}, {vr(Q2,2)}, {vr(S[0],16)}
    v_mfma_f32_32x32x8_bf16 {vr(S[1],16)}, {vr(KB2,2)}, {vr(Q2,2)}, {vr(S[1],16)}
    v_add_u32 v{vA}, 5120, v{vA}
    v_add_u32 v{vB2}, 5120, v{vB2}
    ds_read_b64 {vr(KF1,2)}, v{vA}
    ds_read_b64 {vr(KF1+2,2)}, v{vA} offset:8
    ds_read_b64 {vr(KF2,2)}, v{vB2}
    ds_read_b64 {vr(KB1,2)}, v{vA} offset:2560
    ds_read_b64 {vr(KB1+2,2)}, v{vA} offset:2568
    ds_read_b64 {vr(KB2,2)}, v{vB2} offset:2560
    s_nop 4
    """)
    for s in range(2):
        for r in range(0, 16, 2):
            A(f"v_max3_f32 v{vMax}, v{S[s]+r}, v{S[s]+r+1}, v{vMax}")
    A(f"""
    s_sub_u32 s{sCnt}, s{sCnt}, 1
    s_cmp_lg_u32 s{sCnt}, 0
    s_cbranch_scc1 K2_SLOOP
    v_mov_b32 v{vA}, v{vMax}
    s_waitcnt lgkmcnt(0)
    s_nop 0
    v_permlane32_swap_b32 v{vA}, v{vMax}
    s_nop 1
    v_max_f32 v{vMax}, v{vMax}, v{vA}
    v_sub_f32 v{NEGM}, s{sOffs}, v{vMax}
    """)
    for r in range(1, 16):
        A(f"v_mov_b32 v{NEGM+r}, v{NEGM}")
    for r in range(16):
        A(f"v_mov_b32 v{O+r}, 0")
    for r in range(4):
        A(f"v_mov_b32 v{P1+r}, 0")
    if cfg.get("sched", "A") in ("C", "F"):
        for r in range(12, 16):
            A(f"v_mov_b32 v{S[1]+r}, 0")
    wK1, wK2, wV = T+4, T+5, T+6
    A(f"""
    v_mov_b32 v{wK1}, v{vK1a}
    v_mov_b32 v{wK2}, v{vK2a}
    v_mov_b32 v{wV}, v{vVa}
    ds_read_b64 {vr(KF1,2)}, v{wK1}
    ds_read_b64 {vr(KF1+2,2)}, v{wK1} offset:8
    ds_read_b64 {vr(KF2,2)}, v{wK2}
    s_mov_b64 exec, s[{sMask}:{sMask+1}]
    ds_read_b128 {vr(VB[0],4)}, v{wV}
    ds_read_b128 {vr(VB[0]+4,4)}, v{wV} offset:640
    s_mov_b64 exec, -1
    s_waitcnt lgkmcnt(2)
    v_mfma_f32_32x32x16_bf16 {vr(S[0],16)}, {vr(KF1,4)}, {vr(Q1,4)}, {vr(NEGM,16)}
    v_mfma_f32_32x32x8_bf16 {vr(S[0],16)}, {vr(KF2,2)}, {vr(Q2,2)}, {vr(S[0],16)}
    ds_read_b64 {vr(KF1,2)}, v{wK1} offset:2560
    ds_read_b64 {vr(KF1+2,2)}, v{wK1} offset:2568
    ds_read_b64 {vr(KF2,2)}, v{wK2} offset:2560
    s_mov_b32 s{sCnt}, 0
    s_nop 7
    """)
    stamp(2)
    if cfg.get("flip") is not None:
        A(f"""
        s_setprio 1
        s_cmp_ge_u32 s{sWave}, 4
        s_cbranch_scc1 K2_PRIO_DONE
        s_setprio 2
        """)
        A.label("K2_PRIO_DONE")
    A(".p2align 6")
    A.label("K2_LOOP")
    UN = 8
    sched = cfg.get("sched", "A")
    for u in range(UN):
        Sc, Sn = S[u & 1], S[(u + 1) & 1]
        Vc, Vn = VB[u & 1], VB[(u + 1) & 1]
        ko = (u + 2) * 2560
        vo = (u + 1) * 2560
        def E(i): A(f"v_exp_f32 v{Sc+i}, v{Sc+i}")
        def C(j):
            dst = (P0 + j) if j < 4 else (P1 + j - 4)
            A(f"v_cvt_pk_bf16_f32 v{dst}, v{Sc+2*j}, v{Sc+2*j+1}")
        def Cprev(j):
            dst = (P0 + j) if j < 4 else (P1 + j - 4)
            A(f"v_cvt_pk_bf16_f32 v{dst}, v{Sn+2*j}, v{Sn+2*j+1}")
        def W(): A("s_waitcnt lgkmcnt(0)")
        def QK1(): A(f"v_mfma_f32_32x32x16_bf16 {vr(Sn,16)}, {vr(KF1,4)}, {vr(Q1,4)}, {vr(NEGM,16)}")
        def QK2(): A(f"v_mfma_f32_32x32x8_bf16 {vr(Sn,16)}, {vr(KF2,2)}, {vr(Q2,2)}, {vr(Sn,16)}")
        def PVb(): A(f"v_mfma_f32_32x32x16_bf16 {vr(O,16)}, {vr(Vn+4,4)}, {vr(P1,4)}, {vr(O,16)}")
        def PVa(): A(f"v_mfma_f32_32x32x16_bf16 {vr(O,16)}, {vr(Vc,4)}, {vr(P0,4)}, {vr(O,16)}")
        def DK():
            A(f"ds_read_b64 {vr(KF1,2)}, v{wK1} offset:{ko}")
            A(f"ds_read_b64 {vr(KF1+2,2)}, v{wK1} offset:{ko+8}")
            A(f"ds_read_b64 {vr(KF2,2)}, v{wK2} offset:{ko}")
        def DV():
            A(f"s_mov_b64 exec, s[{sMask}:{sMask+1}]")
            A(f"ds_read_b128 {vr(Vn,4)}, v{wV} offset:{vo}")
            A(f"ds_read_b128 {vr(Vn+4,4)}, v{wV} offset:{vo+640}")
            A(f"s_mov_b64 exec, -1")
        if sched == "A":
            W(); QK1(); E(0); E(1); PVb(); E(2); E(3); C(0); C(1); QK2(); E(4); E(5); DK(); E(6); E(7); C(2); C(3)
            E(8); E(9); PVa(); E(10); E(11); C(4); C(5); DV(); E(12); E(13); E(14); E(15); C(6); C(7)
        elif sched == "B":
            W(); QK1(); E(0); E(1); PVb(); E(2); E(3); E(4); C(0); QK2(); E(5); C(1); E(6); DK(); E(7); C(2); E(8); E(9); C(3)
            E(10); E(11); PVa(); E(12); C(4); E(13); DV(); C(5); E(14); E(15); s_=0; A("s_nop 0") if False else None
            C(6); C(7)
        elif sched == "D":
            W(); QK1(); E(0); E(1); PVb(); DV(); E(2); E(3); E(4); C(0); QK2(); E(5); C(1); DK(); E(6); E(7); C(2); E(8); E(9); C(3)
            E(10); E(11); PVa(); E(12); C(4); E(13); C(5); E(14); E(15); C(6); C(7)
        elif sched == "E":
            def DV2():
                A(f"ds_read_b128 {vr(Vn,4)}, v{wV} offset:{vo}")
                A(f"ds_read_b128 {vr(Vn+4,4)}, v{wV} offset:{vo+640}")
            W(); QK1(); E(0); E(1); PVb(); DV2(); E(2); E(3); E(4); C(0); QK2(); E(5); C(1); DK(); E(6); E(7); C(2); E(8); E(9); C(3)
            E(10); E(11); PVa(); E(12); C(4); E(13); C(5); E(14); E(15); C(6); C(7)
        elif sched == "F":
            Cprev(6); Cprev(7); W(); QK1(); E(0); E(1); E(2); PVb(); DV(); E(3); E(4); C(0); QK2(); E(5); C(1); DK(); E(6); E(7); C(2); E(8); E(9); C(3)
            E(10); E(11); PVa(); E(12); C(4); E(13); C(5); E(14); E(15)
        elif sched == "C":
            Cprev(6); Cprev(7); W(); QK1(); E(0); E(1); E(2); PVb(); E(3); E(4); C(0); QK2(); E(5); C(1); E(6); DK(); E(7); C(2); E(8); E(9); C(3)
            E(10); E(11); PVa(); E(12); C(4); E(13); DV(); C(5); E(14); E(15)
        if cfg.get("flip") is not None:
            pass
    A(f"""
    v_add_u32 v{wK1}, {UN*2560}, v{wK1}
    v_add_u32 v{wK2}, {UN*2560}, v{wK2}
    v_add_u32 v{wV}, {UN*2560}, v{wV}
    s_add_u32 s{sCnt}, s{sCnt}, 1
    s_cmp_eq_u32 s{sCnt}, 1
    s_cbranch_scc1 K2_BAR2
    """)
    A.label("K2_BAR2_RET")
    if cfg.get("flip") is not None:
        A(f"""
        s_cmp_lg_u32 s{sCnt}, {cfg["flip"]}
        s_cbranch_scc1 K2_NOFLIP
        s_cmp_ge_u32 s{sWave}, 4
        s_cbranch_scc1 K2_NOFLIP
        s_setprio 0
        """)
        A.label("K2_NOFLIP")
    A(f"""
    s_cmp_lt_u32 s{sCnt}, {64//UN}
    s_cbranch_scc1 K2_LOOP
    v_mfma_f32_32x32x16_bf16 {vr(O,16)}, {vr(VB[0]+4,4)}, {vr(P1,4)}, {vr(O,16)}
    """)
    A.lines.pop()
    if sched in ("C", "F"):
        A(f"v_cvt_pk_bf16_f32 v{P1+2}, v{S[1]+12}, v{S[1]+13}")
        A(f"v_cvt_pk_bf16_f32 v{P1+3}, v{S[1]+14}, v{S[1]+15}")
        A("s_nop 1")
    A(f"v_mfma_f32_32x32x16_bf16 {vr(O,16)}, {vr(VB[1]+4,4)}, {vr(P1,4)}, {vr(O,16)}")
    stamp(3)
    A(f"""
    s_waitcnt lgkmcnt(0)
    s_nop 15
    s_nop 3
    v_mov_b32 v{T}, v{O+8}
    v_mov_b32 v{T+1}, v{O+8}
    s_nop 1
    v_permlane32_swap_b32 v{T+1}, v{T}
    v_maximum3_f32 v{T+2}, |v{O}|, |v{O+1}|, |v{O+2}|
    v_maximum3_f32 v{T+2}, |v{O+3}|, |v{O+4}|, v{T+2}
    v_maximum3_f32 v{T+2}, |v{O+5}|, |v{O+6}|, v{T+2}
    v_maximum3_f32 v{T+2}, |v{O+7}|, v{T+2}, v{T+2}
    v_maximum3_f32 v{T+3}, |v{O+8}|, |v{O+9}|, |v{O+10}|
    v_maximum3_f32 v{T+3}, |v{O+11}|, v{T+3}, v{T+2}
    v_maximum3_f32 v{T+3}, v{T+3}, |v{T}|, |v{T}|
    ; ok = (T3 < 2^120) && (T2 >= 2^-90)
    v_mov_b32 v{T+4}, {hex(f2u(2.0**120))}
    v_mov_b32 v{T+5}, {hex(f2u(2.0**-90))}
    v_cmp_lt_f32 vcc, v{T+3}, v{T+4}
    v_cmp_ge_f32 s[26:27], v{T+2}, v{T+5}
    s_nop 1
    s_and_b64 s[26:27], s[26:27], vcc
    s_cmp_eq_u64 s[26:27], -1
    s_cbranch_scc1 K2_FIN
    s_cmp_lg_u32 s{sFlag}, 0
    s_cbranch_scc1 K2_FIN
    s_mov_b32 s{sFlag}, 1
    s_mov_b32 s{sNs}, 32
    s_mov_b32 s{sOffs}, 0
    s_branch K2_SAMPLE
    """)
    A.label("K2_FIN")
    A(f"v_rcp_f32 v{T+1}, v{T}")
    A("s_nop 0")
    for r in range(12):
        A(f"v_mul_f32 v{O+r}, v{O+r}, v{T+1}")
    for j in range(6):
        A(f"v_cvt_pk_bf16_f32 v{P0+j}, v{O+2*j}, v{O+2*j+1}")
    A(f"""
    s_lshr_b32 s24, s24, 5
    s_mul_i32 s24, s24, 40
    s_lshr_b32 s25, s{sHead}, 2
    s_mul_i32 s25, s25, 5
    s_add_u32 s24, s24, s25
    s_and_b32 s25, s{sHead}, 3
    s_add_u32 s28, s24, s25
    s_lshl_b32 s28, s28, 10
    s_add_u32 s28, s28, {WS_O}
    buffer_store_dwordx4 {vr(P0,4)}, v{vLane16}, s[8:11], s28 offen
    s_add_u32 s28, s24, 4
    s_lshl_b32 s28, s28, 10
    s_lshr_b32 s29, s25, 1
    s_lshl_b32 s29, s29, 9
    s_add_u32 s28, s28, s29
    s_and_b32 s29, s25, 1
    s_lshl_b32 s29, s29, 3
    s_add_u32 s28, s28, s29
    s_add_u32 s28, s28, {WS_O}
    s_mov_b32 exec_hi, 0
    buffer_store_dwordx2 {vr(P1,2)}, v{vLane16}, s[8:11], s28 offen
    """)
    if prof:
        stamp(4)
        A("s_memrealtime s[50:51]")
        A(f"""
        s_load_dwordx2 s[30:31], s[0:1], 72
        s_waitcnt lgkmcnt(0)
        s_mov_b64 exec, 1
        s_cmp_lg_u32 s2, 0
        s_cbranch_scc1 K2_END
        s_lshl_b32 s32, s{sWave}, 5
        v_mov_b32 v1, s32
        s_sub_u32 s42, s42, s40
        s_sub_u32 s44, s44, s40
        s_sub_u32 s46, s46, s40
        s_sub_u32 s48, s48, s40
        v_mov_b32 v2, s42
        v_mov_b32 v3, s44
        v_mov_b32 v4, s46
        v_mov_b32 v5, s48
        global_store_dwordx4 v1, v[2:5], s[30:31]
        s_sub_u32 s50, s50, s52
        v_mov_b32 v2, s50
        global_store_dword v1, v2, s[30:31] offset:16
        """)
    A("s_endpgm")
    A.label("K2_BAR2")
    A(f"""
    s_cmp_lg_u32 s{sFlag}, 0
    s_cbranch_scc1 K2_BAR2_RET
    s_waitcnt vmcnt(0)
    s_barrier
    s_branch K2_BAR2_RET
    """)
    if cfg.get("merge", True):
        gen_gemm_waves(A, cfg)
    A.label("K2_END")
    A("s_endpgm")
    kernel_footer(A, name, max(120, 48 + 8*cfg.get('nst', 8) + 32) if cfg.get('merge', True) else 120, 64)
```

```python
from asmlib import *
from gen_k2 import WS_Q, WS_KV, WS_H, WS_O, WS_W2F, WS_WOF, WS_PART, WS_SIZE, f2u


def gen_k2b(A, name="k2b_kernel", cfg=None):
    cfg = cfg or {}
    kernel_header(A, name)
    ACC0, ACC1 = 16, 32
    NST = 4
    HB, WB, XB = 48, 64, 80
    A(f"""
    s_cmp_ge_u32 s2, 256
    s_cbranch_scc1 K2B_END
    s_load_dwordx2 s[4:5], s[0:1], 80
    v_and_b32 v1, 63, v0
    v_lshrrev_b32 v2, 6, v0
    v_lshlrev_b32 v3, 4, v1
    v_readfirstlane_b32 s14, v2
    s_lshr_b32 s12, s2, 2            ; tt
    s_and_b32 s13, s2, 3             ; cg
    s_waitcnt lgkmcnt(0)
    s_mov_b32 s8, s4
    s_and_b32 s9, s5, 0xffff
    s_mov_b32 s10, {WS_SIZE}
    s_mov_b32 s11, 0x00020000
    s_mul_i32 s16, s12, {96*1024}
    s_add_u32 s16, s16, {WS_H}
    s_mul_i32 s17, s13, 5
    s_add_u32 s18, s17, 4
    s_add_u32 s17, s17, s14
    s_mul_i32 s17, s17, {96*1024}
    s_add_u32 s17, s17, {WS_W2F}
    s_mul_i32 s18, s18, {96*1024}
    s_add_u32 s18, s18, {WS_W2F}
    s_mul_i32 s19, s14, 24
    """)
    for r in range(32): A(f"v_mov_b32 v{16+r}, 0")
    A(f"""
    v_and_b32 v4, 31, v1
    v_lshlrev_b32 v4, 2, v4
    s_lshl_b32 s25, s12, 7
    s_add_u32 s25, s25, 0x12F0000
    buffer_load_dword v5, v4, s[8:11], s25 offen
    """)
    def body(extra, tag):
        A.label(f"K2B_L{tag}")
        for st in range(NST):
            nxt = (st + NST - 1) % NST
            A(f"buffer_load_dwordx4 {vr(HB+4*nxt,4)}, v3, s[8:11], s20 offen")
            A(f"buffer_load_dwordx4 {vr(WB+4*nxt,4)}, v3, s[8:11], s21 offen")
            A(f"buffer_load_dwordx4 {vr(XB+4*nxt,4)}, v3, s[8:11], s22 offen")
            A("s_add_u32 s20, s20, 1024"); A("s_add_u32 s21, s21, 1024"); A("s_add_u32 s22, s22, 1024")
            A(f"s_waitcnt vmcnt({3*(NST-1)})")
            A(f"v_mfma_f32_32x32x16_bf16 {vr(ACC0,16)}, {vr(WB+4*st,4)}, {vr(HB+4*st,4)}, {vr(ACC0,16)}")
            if extra:
                A(f"v_mfma_f32_32x32x16_bf16 {vr(ACC1,16)}, {vr(XB+4*st,4)}, {vr(HB+4*st,4)}, {vr(ACC1,16)}")
        A("s_sub_u32 s23, s23, 1")
        A("s_cmp_lg_u32 s23, 0")
        A(f"s_cbranch_scc1 K2B_L{tag}")
    A("s_mov_b32 s20, s16"); A("s_mov_b32 s21, s17"); A("s_mov_b32 s22, s18")
    for st in range(NST-1):
        A(f"buffer_load_dwordx4 {vr(HB+4*st,4)}, v3, s[8:11], s20 offen")
        A(f"buffer_load_dwordx4 {vr(WB+4*st,4)}, v3, s[8:11], s21 offen")
        A(f"buffer_load_dwordx4 {vr(XB+4*st,4)}, v3, s[8:11], s22 offen")
        A("s_add_u32 s20, s20, 1024"); A("s_add_u32 s21, s21, 1024"); A("s_add_u32 s22, s22, 1024")
    A("s_mov_b32 s24, 0")
    A.label("K2B_SEG")
    A("s_mov_b32 s23, 6")
    A("s_cmp_eq_u32 s24, s14")
    A("s_cbranch_scc1 K2B_X")
    body(False, "N")
    A("s_branch K2B_SEGE")
    A.label("K2B_X")
    body(True, "X")
    A.label("K2B_SEGE")
    A(f"""
    s_add_u32 s24, s24, 1
    s_cmp_lt_u32 s24, 4
    s_cbranch_scc1 K2B_SEG
    s_nop 15
    s_nop 3
    """)
    for r in range(32): A(f"v_mul_f32 v{16+r}, v{16+r}, v5")
    A(f"""
    s_lshl_b32 s16, s2, 15
    s_lshl_b32 s17, s14, 12
    s_add_u32 s16, s16, s17
    s_add_u32 s16, s16, {WS_PART}
    """)
    for g in range(4):
        A(f"buffer_store_dwordx4 {vr(ACC0+4*g,4)}, v3, s[8:11], s16 offen offset:{1024*g}")
    A("s_add_u32 s16, s16, 16384")
    for g in range(4):
        A(f"buffer_store_dwordx4 {vr(ACC1+4*g,4)}, v3, s[8:11], s16 offen offset:{1024*g}")
    A.label("K2B_END")
    A("s_endpgm")
    kernel_footer(A, name, 96, 32)

def gen_k3(A, name="k3_kernel", cfg=None):
    cfg = cfg or {}
    kernel_header(A, name)
    ACC0, ACC1 = 16, 32
    WB = 48
    XB = 208
    OB = 248
    OF = [4, 8, 12]
    L_RED = 40960
    L_OUT = 40960
    OROW = 336
    A(f"""
    s_cmp_ge_u32 s2, 256
    s_cbranch_scc1 K3_END
    s_load_dwordx2 s[4:5], s[0:1], 80
    s_load_dwordx2 s[30:31], s[0:1], 64      ; out
    v_and_b32 v1, 63, v0
    v_lshrrev_b32 v2, 6, v0
    v_lshlrev_b32 v3, 4, v1
    v_readfirstlane_b32 s14, v2
    s_and_b32 s12, s2, 7
    s_lshr_b32 s13, s2, 5
    s_lshl_b32 s13, s13, 3
    s_add_u32 s12, s12, s13                  ; tt
    s_lshr_b32 s13, s2, 3
    s_and_b32 s13, s13, 3                    ; cg
    s_mul_i32 s16, s12, {40*1024}
    s_mul_i32 s17, s14, {10*1024}
    s_add_u32 s16, s16, s17
    s_add_u32 s16, s16, {WS_O}
    s_mov_b32 m0, s17
    s_mov_b32 s10, {WS_SIZE}
    s_mov_b32 s11, 0x00020000
    s_waitcnt lgkmcnt(0)
    s_mov_b32 s8, s4
    s_and_b32 s9, s5, 0xffff
    """)
    for i in range(10):
        A("buffer_load_dwordx4 v3, s[8:11], s16 offen lds")
        if i < 9:
            A("s_add_u32 m0, m0, 1024"); A("s_add_u32 s16, s16, 1024")
    A(f"""
    s_mul_i32 s17, s13, 5
    s_add_u32 s18, s17, 4
    s_add_u32 s17, s17, s14
    s_mul_i32 s17, s17, {40*1024}
    s_add_u32 s17, s17, {WS_WOF}
    s_mul_i32 s18, s18, {40*1024}
    s_mul_i32 s19, s14, {10*1024}
    s_add_u32 s18, s18, s19
    s_add_u32 s18, s18, {WS_WOF}
    ; PART
    s_lshl_b32 s16, s12, 2
    s_add_u32 s16, s16, s13
    s_lshl_b32 s16, s16, 15
    s_lshl_b32 s19, s14, 12
    s_add_u32 s16, s16, s19
    s_add_u32 s16, s16, {WS_PART}
    """)
    for g in range(4):
        A(f"buffer_load_dwordx4 {vr(ACC0+4*g,4)}, v3, s[8:11], s16 offen offset:{1024*g}")
    A("s_add_u32 s16, s16, 16384")
    for g in range(4):
        A(f"buffer_load_dwordx4 {vr(ACC1+4*g,4)}, v3, s[8:11], s16 offen offset:{1024*g}")
    for i in range(10):
        if i % 4 == 0 and i > 0: A("s_add_u32 s18, s18, 4096")
        A(f"buffer_load_dwordx4 {vr(XB+4*i,4)}, v3, s[8:11], s18 offen offset:{1024*(i%4)}")
    for i in range(40):
        if i % 4 == 0 and i > 0: A("s_add_u32 s17, s17, 4096")
        A(f"buffer_load_dwordx4 {vr(WB+4*i,4)}, v3, s[8:11], s17 offen offset:{1024*(i%4)}")
    A("s_waitcnt vmcnt(58)")
    A("s_barrier")
    A("s_mul_i32 s19, s14, 10240")
    A("v_add_u32 v2, s19, v3")
    steps = [("x", i) for i in range(10)] + [("w", i) for i in range(40)]
    def rd(n):
        kind, i = steps[n]
        reg = OF[n % 3]
        if kind == "x": A(f"ds_read_b128 {vr(reg,4)}, v2 offset:{1024*i}")
        else: A(f"ds_read_b128 {vr(reg,4)}, v3 offset:{1024*i}")
    rd(0); rd(1)
    for n, (kind, i) in enumerate(steps):
        if n + 2 < 50: rd(n + 2)
        if n == 0: A("s_waitcnt vmcnt(40)")
        if kind == "w": A(f"s_waitcnt vmcnt({39-i})")
        A(f"s_waitcnt lgkmcnt({min(2, 49-n)})")
        if kind == "x":
            A(f"v_mfma_f32_32x32x16_bf16 {vr(ACC1,16)}, {vr(XB+4*i,4)}, {vr(OF[n%3],4)}, {vr(ACC1,16)}")
        else:
            A(f"v_mfma_f32_32x32x16_bf16 {vr(ACC0,16)}, {vr(WB+4*i,4)}, {vr(OF[n%3],4)}, {vr(ACC0,16)}")
        if n == 12:
            A(f"s_lshl_b32 s19, s14, 12")
            A(f"s_add_u32 s19, s19, {L_RED}")
            A(f"v_add_u32 v248, s19, v3")
            A("s_nop 7")
            for g in range(4):
                A(f"ds_write_b128 v248, {vr(ACC1+4*g,4)} offset:{1024*g}")
            A("s_waitcnt lgkmcnt(0)")
            rd_fix = True
    A("s_barrier")
    A(f"""
    s_lshl_b32 s19, s14, 10
    s_add_u32 s19, s19, {L_RED}
    v_add_u32 v248, s19, v3
    """)
    RB = 48
    for k in range(4):
        A(f"ds_read_b128 {vr(RB+4*k,4)}, v248 offset:{4096*k}")
    PK = 64
    A("s_nop 7")
    for g in range(4):
        A(f"v_cvt_pk_bf16_f32 v{PK+2*g}, v{ACC0+4*g}, v{ACC0+4*g+1}")
        A(f"v_cvt_pk_bf16_f32 v{PK+2*g+1}, v{ACC0+4*g+2}, v{ACC0+4*g+3}")
    A("s_waitcnt lgkmcnt(0)")
    for i in range(4):
        A(f"v_add_f32 v{RB+i}, v{RB+i}, v{RB+4+i}")
        A(f"v_add_f32 v{RB+8+i}, v{RB+8+i}, v{RB+12+i}")
        A(f"v_add_f32 v{RB+i}, v{RB+i}, v{RB+8+i}")
    A(f"v_cvt_pk_bf16_f32 v{PK+8}, v{RB}, v{RB+1}")
    A(f"v_cvt_pk_bf16_f32 v{PK+9}, v{RB+2}, v{RB+3}")
    A("s_barrier")
    A(f"""
    v_and_b32 v5, 31, v1
    v_lshrrev_b32 v6, 5, v1
    v_mul_u32_u24 v7, {OROW}, v5
    v_lshl_add_u32 v7, v6, 3, v7
    v_add_u32 v7, {L_OUT}, v7
    s_lshl_b32 s19, s14, 6
    v_add_u32 v8, s19, v7
    s_lshl_b32 s19, s14, 4
    v_add_u32 v9, s19, v7
    """)
    for g in range(4):
        A(f"ds_write_b64 v8, {vr(PK+2*g,2)} offset:{16*g}")
    A(f"ds_write_b64 v9, {vr(PK+8,2)} offset:256")
    A("s_waitcnt lgkmcnt(0)")
    A("s_barrier")
    A(f"""
    s_mov_b32 s20, 52429
    s_lshl_b32 s16, s12, 5
    s_mul_i32 s16, s16, 1280
    s_mul_i32 s17, s13, 320
    s_add_u32 s16, s16, s17
    s_add_u32 s30, s30, s16
    s_addc_u32 s31, s31, 0
    """)
    for k in range(3):
        A(f"""
        v_add_u32 v5, {256*k}, v0
        v_mul_lo_u32 v6, v5, s20
        v_lshrrev_b32 v6, 20, v6
        v_mul_u32_u24 v7, 20, v6
        v_sub_u32 v7, v5, v7
        v_mul_u32_u24 v8, {OROW}, v6
        v_lshl_add_u32 v8, v7, 4, v8
        v_add_u32 v8, {L_OUT}, v8
        v_mul_u32_u24 v9, 1280, v6
        v_lshl_add_u32 v{10+k}, v7, 4, v9
        """)
        if k == 2:
            A("v_cmp_gt_u32 vcc, 640, v5")
            A("s_and_saveexec_b64 s[22:23], vcc")
            A("s_cbranch_execz K3_SKIP")
        A(f"ds_read_b128 {vr(72+4*k,4)}, v8")
        A("s_waitcnt lgkmcnt(0)")
        A(f"global_store_dwordx4 v{10+k}, {vr(72+4*k,4)}, s[30:31]")
    A.label("K3_SKIP")
    A.label("K3_END")
    A("s_endpgm")
    kernel_footer(A, name, 252, 40)
```

```python
import sys
from asmlib import *
import gen_k1, gen_k2, gen_k3
NAME = "parallel_sum__softmax_full_mha__dense_activation_squared_relu__prompt"
def build(mode="full", cfg=None):
    A = Asm()
    hdr = []
    if mode == "k2only":
        cfg = dict(cfg or {}); cfg["merge"] = False
        hdr.append("; @launch kernel=k2_kernel grid=(256,1,1) block=(512,1,1) lds=163840")
    elif mode == "k1only":
        hdr.append(f"; @launch kernel=k1_kernel grid=(256,1,1) block=(768,1,1) lds={gen_k1.K1_LDS}")
    else:
        hdr.append(f"; @launch kernel=k1_kernel grid=(256,1,1) block=(768,1,1) lds={gen_k1.K1_LDS}")
        hdr.append("; @launch kernel=k2_kernel grid=(256,1,1) block=(768,1,1) lds=163840")
        hdr.append("; @launch kernel=k3_kernel grid=(256,1,1) block=(256,1,1) lds=57344")
    A.lines += hdr
    A('.amdgcn_target "amdgcn-amd-amdhsa--gfx950"')
    if mode != "k2only":
        gen_k1.gen_k1(A, "k1_kernel", cfg)
    if mode != "k1only":
        gen_k2.gen_k2(A, "k2_kernel", cfg)
    if mode not in ("k2only", "k1only"):
        gen_k3.gen_k3(A, "k3_kernel", cfg)
    txt = A.text()
    if cfg and cfg.get("stflag"):
        import re
        out = []
        for l in txt.split("\n"):
            if re.match(r"\s+(buffer|global)_store_", l) and "s[58:59]" not in l and "s[30:31] offset" not in l:
                if cfg["stflag"] == "none." : pass
                l = l + " " + cfg["stflag"]
            out.append(l)
        txt = "\n".join(out)
    if cfg and cfg.get("nostore_k1"):
        out = []; ink1 = False
        for l in txt.split("\n"):
            if l.startswith("k1_kernel:"): ink1 = True
            if l.startswith("k2_kernel:"): ink1 = False
            if ink1 and "buffer_store_" in l: l = "    s_nop 0"
            out.append(l)
        txt = "\n".join(out)
    return txt
if __name__ == "__main__":
    mode = sys.argv[1]; out = sys.argv[2]
    cfg = {}
    for a in sys.argv[3:]:
        k, v = a.split("=")
        cfg[k] = eval(v)
    open(out, "w").write(build(mode, cfg))
```

```python
import sys
from asmlib import *
import gen_k1, gen_k2, gen_k3
NAME = "parallel_sum__softmax_full_mha__dense_activation_squared_relu__prompt"
def build(mode="full", cfg=None):
    A = Asm()
    hdr = []
    if mode == "k2only":
        cfg = dict(cfg or {}); cfg["merge"] = False
        hdr.append("; @launch kernel=k2_kernel grid=(256,1,1) block=(512,1,1) lds=163840")
    elif mode == "k1only":
        hdr.append(f"; @launch kernel=k1_kernel grid=(256,1,1) block=(768,1,1) lds={gen_k1.K1_LDS}")
    else:
        hdr.append(f"; @launch kernel=k1_kernel grid=(256,1,1) block=(768,1,1) lds={gen_k1.K1_LDS}")
        hdr.append("; @launch kernel=k2_kernel grid=(256,1,1) block=(768,1,1) lds=163840")
        hdr.append("; @launch kernel=k3_kernel grid=(256,1,1) block=(256,1,1) lds=57344")
    A.lines += hdr
    A('.amdgcn_target "amdgcn-amd-amdhsa--gfx950"')
    if mode != "k2only":
        gen_k1.gen_k1(A, "k1_kernel", cfg)
    if mode != "k1only":
        gen_k2.gen_k2(A, "k2_kernel", cfg)
    if mode not in ("k2only", "k1only"):
        gen_k3.gen_k3(A, "k3_kernel", cfg)
    txt = A.text()
    if cfg and cfg.get("stflag"):
        import re
        out = []
        for l in txt.split("\n"):
            if re.match(r"\s+(buffer|global)_store_", l) and "s[58:59]" not in l and "s[30:31] offset" not in l:
                if cfg["stflag"] == "none." : pass
                l = l + " " + cfg["stflag"]
            out.append(l)
        txt = "\n".join(out)
    if cfg and cfg.get("rt"):
        import re
        out = []; kidx = -1; uid = 0
        for l in txt.split("\n"):
            m = re.match(r"(k\d\w*_kernel):", l)
            if m:
                kidx += 1
                out.append(l)
                out.append("    s_memrealtime s[98:99]")
                out.append("    s_mov_b32 s96, s2")
                continue
            if l.strip() == "s_endpgm" and kidx >= 0:
                uid += 1
                out += [
                  "    s_and_b32 s97, s96, 31",
                  "    s_cmp_lg_u32 s97, 0",
                  f"    s_cbranch_scc1 RT_E{uid}",
                  "    s_cmp_ge_u32 s96, 256",
                  f"    s_cbranch_scc1 RT_E{uid}",
                  "    s_memrealtime s[100:101]",
                  "    s_load_dwordx2 s[94:95], s[0:1], 72",
                  "    s_waitcnt lgkmcnt(0)",
                  f"    s_add_u32 s94, s94, {cfg.get('rtoff', lambda k: 0)(kidx)}",
                  "    s_addc_u32 s95, s95, 0",
                  "    s_mov_b64 exec, 1",
                  "    s_not_b32 s98, s98",
                  "    v_mov_b32 v0, 0",
                  "    v_mov_b32 v1, s98",
                  "    v_mov_b32 v2, s100",
                  f"    global_atomic_umax v0, v1, s[94:95] offset:{8*kidx}",
                  f"    global_atomic_umax v0, v2, s[94:95] offset:{8*kidx+4}",
                  f"RT_E{uid}:",
                ]
            if "amdhsa_next_free_sgpr" in l: l = "  .amdhsa_next_free_sgpr 102"
            out.append(l)
        txt = "\n".join(out)
    if cfg and cfg.get("nostore_k1"):
        out = []; ink1 = False
        for l in txt.split("\n"):
            if l.startswith("k1_kernel:"): ink1 = True
            if l.startswith("k2_kernel:"): ink1 = False
            if ink1 and "buffer_store_" in l: l = "    s_nop 0"
            out.append(l)
        txt = "\n".join(out)
    return txt
if __name__ == "__main__":
    mode = sys.argv[1]; out = sys.argv[2]
    cfg = {}
    for a in sys.argv[3:]:
        k, v = a.split("=")
        cfg[k] = eval(v)
    open(out, "w").write(build(mode, cfg))
```
